```python
import torch

def _softmax(x, axis=-1):
    return torch.softmax(x, dim=axis)
def _gelu(x):
    return torch.nn.functional.gelu(x, approximate="tanh")
def _silu(x):
    return torch.nn.functional.silu(x)
def _sigmoid(x):
    return torch.sigmoid(x)
def _layernorm(x, axis=-1, eps=1e-5):
    m = x.mean(dim=axis, keepdim=True)
    v = x.var(dim=axis, keepdim=True, unbiased=False)
    return (x - m) / torch.sqrt(v + eps)
def _scatter_add(tgt, idx, src, axis=0):
    return tgt.clone().index_add_(axis, idx, src)
def _segment_sum(src, seg, n):
    out = torch.zeros((n,) + src.shape[1:], dtype=src.dtype)
    return out.index_add_(0, seg, src)
def _pad(x, pw):
    flat = tuple(v for pair in reversed(pw) for v in pair)
    return torch.nn.functional.pad(x, flat)

kernel_name = 'interleave_layers__gqa_block_cached__glu_gated_glu__decode'

def setup_inputs():

    _w = (lambda a: (lambda t: t.to(torch.bfloat16) if t.is_floating_point() else t)(torch.as_tensor(a)))
    def _A_setup():
        B, Sq, D = 1, 1, 512
        Hq, Hkv, Sk, Dh = 32, 32, 16384, 128
        assert Hq % Hkv == 0, (Hq, Hkv)
        return {
            "x": _w((lambda *s: torch.randn(*s, dtype=torch.bfloat16) * 0.05)(B, Sq, D)),
            "k_cache": _w((lambda *s: torch.randn(*s, dtype=torch.bfloat16) * 1.6)(B, Hkv, Sk, Dh)),
            "v_cache": _w((lambda *s: torch.randn(*s, dtype=torch.bfloat16) * 1.6)(B, Hkv, Sk, Dh)),
            "wq": _w((lambda *s: torch.randn(*s, dtype=torch.bfloat16) * 1.6)(D, Hq * Dh) * (D ** -0.5)),
            "wo": _w((lambda *s: torch.randn(*s, dtype=torch.bfloat16) * 1.6)(Hq * Dh, D) * ((Hq * Dh) ** -0.5)),
        }
    _A_in = _A_setup()

    def _B_setup():
        B, S, D, F = 1, 1, 512, 1376
        return {
            "x": _w((lambda *s: torch.randn(*s, dtype=torch.bfloat16) * 0.05)(B, S, D)),
            "w_gate": _w((lambda *s: torch.randn(*s, dtype=torch.bfloat16) * 0.05)(D, F)),
            "w_up": _w((lambda *s: torch.randn(*s, dtype=torch.bfloat16) * 0.05)(D, F)),
            "w_down": _w((lambda *s: torch.randn(*s, dtype=torch.bfloat16) * 0.05)(F, D)),
        }
    _B_in = _B_setup()

    return {
        "A_x": _A_in["x"],
        "A_k_cache": _A_in["k_cache"],
        "A_v_cache": _A_in["v_cache"],
        "A_wq": _A_in["wq"],
        "A_wo": _A_in["wo"],
        "B_x": _B_in["x"],
        "B_w_gate": _B_in["w_gate"],
        "B_w_up": _B_in["w_up"],
        "B_w_down": _B_in["w_down"],
    }

def reference(A_x, A_k_cache, A_v_cache, A_wq, A_wo, B_x, B_w_gate, B_w_up, B_w_down):
    def _A_ref(x, k_cache, v_cache, wq, wo):
        B, Sq, D = x.shape
        Hq, Dh = 32, 128
        Hkv = k_cache.shape[1]
        rep = Hq // Hkv
        q = (lambda x, *d: x.permute(*d))((x @ wq).reshape(B, Sq, Hq, Dh), 0, 2, 1, 3)
        k = (lambda x, n, axis: torch.repeat_interleave(x, n, dim=axis))(k_cache, rep, axis=1)
        v = (lambda x, n, axis: torch.repeat_interleave(x, n, dim=axis))(v_cache, rep, axis=1)
        scores = torch.einsum("bhqd,bhkd->bhqk", q, k) * (Dh ** -0.5)
        p = _softmax(scores, axis=-1)
        o = torch.einsum("bhqk,bhkd->bhqd", p, v)
        return (lambda x, *d: x.permute(*d))(o, 0, 2, 1, 3).reshape(B, Sq, Hq * Dh) @ wo

    def _B_ref(x, w_gate, w_up, w_down):
        g = torch.einsum("bsd,df->bsf", x, w_gate)
        u = torch.einsum("bsd,df->bsf", x, w_up)
        h = _sigmoid(g) * u
        return torch.einsum("bsf,fd->bsd", h, w_down)

    x = A_x
    x = x + _A_ref(_layernorm(x, axis=-1), A_k_cache, A_v_cache, A_wq, A_wo)
    x = x + _B_ref(_layernorm(x, axis=-1), B_w_gate, B_w_up, B_w_down)
    x = x + _A_ref(_layernorm(x, axis=-1), A_k_cache, A_v_cache, A_wq, A_wo)
    x = x + _B_ref(_layernorm(x, axis=-1), B_w_gate, B_w_up, B_w_down)
    return x
```

```python
import re

TRANS = ('v_exp_f32', 'v_log_f32', 'v_rcp_f32', 'v_rsq_f32', 'v_sqrt_f32', 'v_sin_f32', 'v_cos_f32')


def expand(tok):
    tok = tok.strip()
    tok = tok.lstrip('-')
    m = re.match(r'^abs\((.*)\)$', tok)
    if m:
        tok = m.group(1)
    m = re.match(r'^([vas])\[(\d+):(\d+)\]$', tok)
    if m:
        return [f'{m.group(1)}{i}' for i in range(int(m.group(2)), int(m.group(3)) + 1)]
    m = re.match(r'^([vas])(\d+)$', tok)
    if m:
        return [tok]
    if tok in ('vcc', 'exec', 'm0', 'scc'):
        return [tok]
    if tok in ('vcc_lo', 'vcc_hi'):
        return ['vcc']
    if tok in ('exec_lo', 'exec_hi'):
        return ['exec']
    return []


class Ins:
    __slots__ = ('mn', 'cls', 'w', 'r', 'dpp_r', 'text', 'is_trans', 'is_dl', 'store_data', 'srcC')


def split_ops(s):
    out = []
    depth = 0
    cur = ''
    for ch in s:
        if ch in '[(':
            depth += 1
        if ch in '])':
            depth -= 1
        if ch == ',' and depth == 0:
            out.append(cur.strip())
            cur = ''
        else:
            cur += ch
    if cur.strip():
        out.append(cur.strip())
    return out


def parse(text):
    t = text.strip()
    t = t.split(';')[0].strip()
    m = re.match(r'^(\S+)\s*(.*)$', t)
    mn, rest = m.group(1), m.group(2)
    i = Ins()
    i.text = text
    i.mn = mn
    i.w = set()
    i.r = set()
    i.dpp_r = set()
    i.is_trans = False
    i.is_dl = False
    i.store_data = set()
    i.srcC = set()
    ops = split_ops(rest)
    mods = ''
    if ops:
        parts = ops[-1].split(None, 1)
        if len(parts) == 2 and not parts[0].startswith('quad_perm'):
            ops[-1] = parts[0]
            mods = parts[1]
    base = re.sub(r'_(e32|e64|dpp|sdwa)$', '', mn)
    if mn.startswith('v_'):
        i.cls = 'valu'
        is_dpp = mn.endswith('_dpp') or 'row_' in mods or 'quad_perm' in mods
        if base.startswith('v_cmp'):
            i.w |= set(expand(ops[0]))
            for o in ops[1:]:
                i.r |= set(expand(o))
        elif base in ('v_permlane32_swap_b32', 'v_permlane16_swap_b32', 'v_swap_b32'):
            for o in ops[:2]:
                i.w |= set(expand(o))
                i.r |= set(expand(o))
        elif base in ('v_add_co_u32', 'v_sub_co_u32', 'v_addc_co_u32', 'v_subb_co_u32', 'v_div_scale_f32'):
            i.w |= set(expand(ops[0])) | set(expand(ops[1]))
            for o in ops[2:]:
                i.r |= set(expand(o))
        else:
            i.w |= set(expand(ops[0]))
            for o in ops[1:]:
                i.r |= set(expand(o))
            if base in ('v_fmac_f32', 'v_dot2c_f32_bf16', 'v_pk_fmac_f16', 'v_dot2c_f32_f16'):
                i.r |= set(expand(ops[0]))
                i.srcC |= set(expand(ops[0]))
            if base == 'v_dot2_f32_bf16':
                i.srcC |= set(expand(ops[3]))
            if base == 'v_cndmask_b32' and len(ops) == 3:
                i.r.add('vcc')
            if is_dpp:
                i.dpp_r |= set(expand(ops[1]))
        if base in TRANS:
            i.is_trans = True
        if base.startswith('v_dot'):
            i.is_dl = True
    elif mn.startswith('s_'):
        i.cls = 'salu'
        if mn.startswith(('s_cmp', 's_cbranch', 's_branch', 's_waitcnt', 's_nop', 's_barrier', 's_endpgm', 's_sleep',
                          's_setprio', 's_bitcmp')):
            for o in ops:
                i.r |= set(expand(o))
        else:
            if ops:
                i.w |= set(expand(ops[0]))
            for o in ops[1:]:
                i.r |= set(expand(o))
            if 'saveexec' in mn:
                i.w.add('exec')
                i.r.add('exec')
        if mn.startswith(('s_load', 's_buffer_load', 's_memtime', 's_memrealtime')):
            i.cls = 'smem'
    elif mn.startswith(('buffer_', 'global_', 'flat_')):
        i.cls = 'vmem'
        lds = ' lds' in (' ' + mods) or 'load_lds' in mn
        if 'store' in mn:
            for o in ops:
                i.r |= set(expand(o))
            if mn.endswith(('x3', 'x4')):
                d = ops[0] if mn.startswith('buffer_') else ops[1]
                i.store_data = set(expand(d))
        elif 'atomic' in mn:
            for o in ops:
                i.r |= set(expand(o))
            if 'sc0' in mods:
                i.w |= set(expand(ops[0]))
        elif 'load' in mn:
            if lds:
                for o in ops:
                    i.r |= set(expand(o))
                i.r.add('m0')
            else:
                i.w |= set(expand(ops[0]))
                for o in ops[1:]:
                    i.r |= set(expand(o))
    elif mn.startswith('ds_'):
        i.cls = 'ds'
        if 'write' in mn or mn.startswith('ds_add') and 'rtn' not in mn:
            for o in ops:
                i.r |= set(expand(o))
        else:
            i.w |= set(expand(ops[0]))
            for o in ops[1:]:
                i.r |= set(expand(o))
    else:
        i.cls = 'other'
    return i


def base_mn(mn):
    return re.sub(r'_(e32|e64|dpp|sdwa)$', '', mn)


def required(p, c):
    need = 0
    pb, cb = base_mn(p.mn), base_mn(c.mn)
    if p.cls == 'valu':
        wv = {x for x in p.w if x[0] in 'va' and x not in ('vcc',)}
        ws = {x for x in p.w if x[0] == 's' or x == 'vcc'}
        if c.cls == 'valu':
            if wv & c.dpp_r:
                need = max(need, 2)
            if cb in ('v_readfirstlane_b32', 'v_readlane_b32') and wv & c.r:
                need = max(need, 1)
            if cb.startswith('v_permlane') and wv & c.r:
                need = max(need, 2)
            if p.is_trans and not c.is_trans and wv & (c.r | c.w):
                need = max(need, 1)
            if p.is_dl and wv & (c.r | c.w):
                if pb == cb and not (wv & (c.r - c.srcC)):
                    pass
                else:
                    need = max(need, 3)
            if ws & c.r:
                need = max(need, 4 if cb in ('v_readlane_b32', 'v_writelane_b32') else 2)
            if 'exec' in p.w:
                need = max(need, 5)
        elif c.cls in ('vmem', 'ds'):
            if ws & c.r:
                need = max(need, 5)
            if p.is_dl and wv & c.r:
                need = max(need, 3)
            if p.is_trans and wv & c.r:
                need = max(need, 1)
    if p.cls == 'vmem' and p.store_data and (p.store_data & c.w):
        need = max(need, 2)
    if p.cls == 'salu' and 'm0' in p.w and 'm0' in c.r and c.cls in ('vmem', 'ds'):
        need = max(need, 1)
    return need


class Asm:
    def __init__(self):
        self.lines = []
        self.hist = []
        self.vm = []
        self.nlabel = 0

    def raw(self, s):
        self.lines.append(s)

    def comment(self, s):
        self.lines.append('  ; ' + s)

    def label(self, name, pad=True):
        self.lines.append(f'{name}:')
        self.hist = []
        if pad:
            self.lines.append('  s_nop 4')

    def newlabel(self, p='L'):
        self.nlabel += 1
        return f'{p}_{self.nlabel}'

    def __call__(self, text, tag=None):
        i = parse(text)
        if i.mn == 's_nop':
            n = int(text.split()[1]) + 1
            self.lines.append('  ' + text)
            self.hist.append((i, n))
            self.hist = self.hist[-12:]
            return
        dist = 0
        need_extra = 0
        for p, slots in reversed(self.hist):
            r = required(p, i)
            if r > dist:
                need_extra = max(need_extra, r - dist)
            dist += slots
            if dist >= 6:
                break
        if need_extra:
            self.lines.append(f'  s_nop {need_extra - 1}')
            self.hist.append((parse('s_nop 0'), need_extra))
        self.lines.append('  ' + text)
        self.hist.append((i, 1))
        self.hist = self.hist[-12:]
        if i.cls == 'vmem' and not i.mn.startswith(('buffer_wbl2', 'buffer_inv')):
            assert len(self.vm) < 63, 'too many outstanding vmem'
            self.vm.append(tag)

    def vm_wait(self, tag):
        if tag not in self.vm:
            return
        idx = len(self.vm) - 1 - self.vm[::-1].index(tag)
        n_after = len(self.vm) - 1 - idx
        self(f's_waitcnt vmcnt({n_after})')
        self.vm = self.vm[idx + 1:]

    def vm_wait_all(self):
        self('s_waitcnt vmcnt(0)')
        self.vm = []

    def vm_room(self, limit=62):
        if len(self.vm) > limit:
            n_after = limit
            self(f's_waitcnt vmcnt({n_after})')
            self.vm = self.vm[len(self.vm) - n_after:]

    def text(self):
        return '\n'.join(self.lines) + '\n'
```

```python
import sys, os
sys.path.insert(0, os.path.dirname(__file__))
from asmgen import Asm

NAME = 'interleave_layers__gqa_block_cached__glu_gated_glu__decode_kernel'

LDSK = 39
NA = 64
VDATA0 = 56
NVQ = (256 - VDATA0) // 4
NKV = 128 - LDSK - NA
NVR = NVQ - NKV
LDS_TOTAL = 163840
SCR = 0
XN = SCR
ML = SCR
OW = SCR + 2048
RP = SCR + 2048
GP = SCR + 2048 + 256
QP = SCR + 2048 + 768
QL = SCR + 2048

ARENA_T = 0x180000
A_X1 = 0x000000
A_RS1 = 0x040000
A_RS2 = 0x0C0000
A_AG1 = 0x140000
A_AG2 = 0x142000
A_X4 = 0x144000
DBG_OFF = 0x4000000

POL_KV = 'nt'
POL_W = ''
XLD = 'sc1'
XST = 'sc1'

vLANE, vOFF, vNEGM, vLACC, vMRUN = 0, 1, 2, 3, 4
vT, vU, vW_ = 5, 6, 7
vA = [8, 9, 10, 11]
vQ = [12, 13, 14, 15]
vO = list(range(16, 24))
vE, vPLO, vPHI, vX27 = 24, 25, 26, 27
vTMP = [[28, 29, 30, 31], [32, 33, 34, 35]]
vSC = list(range(36, 52))
vRA = 52
vM = [52, 53, 54, 55]


def quad(b):
    return [b, b + 1, b + 2, b + 3]


def rq(kind, b):
    return f'{kind}[{b}:{b + 3}]'


def gen(debug=False, stop_after=None):
    a = Asm()
    R = a.raw
    R(f'; @launch grid=(256,1,1) block=(256,1,1) lds={LDS_TOTAL}')
    R('.amdgcn_target "amdgcn-amd-amdhsa--gfx950"')
    R('.text')
    R(f'.globl {NAME}')
    R('.p2align 8')
    R(f'.type {NAME},@function')
    R(f'{NAME}:')

    dbg_slot = [0]

    def dump(regs, name):
        if not debug:
            return
        slot = dbg_slot[0]
        dbg_slot[0] += 1
        a.vm_wait_all()
        a('s_lshl_b32 s12, s2, 2')
        a('s_add_u32 s12, s12, s3')
        a('s_lshl_b32 s12, s12, 13')
        a('s_lshl_b32 s13, s10, 23')
        a('s_add_u32 s12, s12, s13')
        a(f's_add_u32 s12, s12, {DBG_OFF + slot * 0x1000000}')
        a('s_add_u32 s12, s38, s12')
        a('s_addc_u32 s13, s39, 0')
        a(f'v_lshlrev_b32 v{vX27}, 2, v{vLANE}')
        for k, r in enumerate(regs):
            if k == 8:
                a(f'v_add_u32 v{vX27}, 2048, v{vX27}')
            if k == 16:
                a(f'v_add_u32 v{vX27}, 2048, v{vX27}')
            a(f'global_store_dword v{vX27}, {r}, s[12:13] offset:{(k % 8) * 256}')
        a.vm_wait_all()
        print(f'dump slot {slot}: {name} ({len(regs)} regs)', file=sys.stderr)

    def allreduce_row(v, op='add'):
        o = f'v_{op}_f32_dpp'
        a(f'{o} v{v}, v{v}, v{v} quad_perm:[1,0,3,2] row_mask:0xf bank_mask:0xf')
        a(f'{o} v{v}, v{v}, v{v} quad_perm:[2,3,0,1] row_mask:0xf bank_mask:0xf')
        a(f'{o} v{v}, v{v}, v{v} row_half_mirror row_mask:0xf bank_mask:0xf')
        a(f'{o} v{v}, v{v}, v{v} row_mirror row_mask:0xf bank_mask:0xf')

    def allreduce_x16(v, tmp, op='add'):
        a(f'v_mov_b32 v{tmp}, v{v}')
        a(f'v_permlane16_swap_b32 v{tmp}, v{v}')
        a(f'v_{op}_f32 v{v}, v{v}, v{tmp}')

    def allreduce_x32(v, tmp, op='add'):
        a(f'v_mov_b32 v{tmp}, v{v}')
        a(f'v_permlane32_swap_b32 v{tmp}, v{v}')
        a(f'v_{op}_f32 v{v}, v{v}, v{tmp}')

    def allreduce64(v, tmp, op='add'):
        allreduce_row(v, op)
        allreduce_x16(v, tmp, op)
        allreduce_x32(v, tmp, op)

    def bf16r(dst, src):
        a(f'v_cvt_pk_bf16_f32 v{dst}, v{src}, v{src}')
        a(f'v_and_b32 v{dst}, 0xffff0000, v{dst}')

    def layernorm(xq, f, d, t0, t1, t2):
        for k in range(4):
            a(f'v_lshlrev_b32 v{f[2 * k]}, 16, v{xq[k]}')
            a(f'v_and_b32 v{f[2 * k + 1]}, 0xffff0000, v{xq[k]}')
        a(f'v_add_f32 v{t0}, v{f[0]}, v{f[1]}')
        for k in range(2, 8):
            a(f'v_add_f32 v{t0}, v{t0}, v{f[k]}')
        allreduce64(t0, t1)
        a(f'v_mul_f32 v{t0}, 0x3b000000, v{t0}')
        for k in range(8):
            a(f'v_sub_f32 v{d[k]}, v{f[k]}, v{t0}')
        a(f'v_mul_f32 v{t2}, v{d[0]}, v{d[0]}')
        for k in range(1, 8):
            a(f'v_fmac_f32 v{t2}, v{d[k]}, v{d[k]}')
        allreduce64(t2, t1)
        a(f'v_mul_f32 v{t2}, 0x3b000000, v{t2}')
        bf16r(t0, t0)
        bf16r(t2, t2)
        a(f'v_add_f32 v{t2}, 0x3727c5ac, v{t2}')
        bf16r(t2, t2)
        a(f'v_sqrt_f32 v{t2}, v{t2}')
        bf16r(t2, t2)
        a(f'v_rcp_f32 v{t1}, v{t2}')
        for k in range(8):
            a(f'v_sub_f32 v{d[k]}, v{f[k]}, v{t0}')
        for k in range(0, 8, 2):
            a(f'v_cvt_pk_bf16_f32 v{f[k]}, v{d[k]}, v{d[k + 1]}')
        for k in range(0, 8, 2):
            a(f'v_and_b32 v{f[k + 1]}, 0xffff0000, v{f[k]}')
            a(f'v_lshlrev_b32 v{f[k]}, 16, v{f[k]}')
        for k in range(8):
            a(f'v_mul_f32 v{d[k]}, v{f[k]}, v{t1}')
        for k in range(8):
            a(f'v_fma_f32 v{f[k]}, -v{d[k]}, v{t2}, v{f[k]}')
        for k in range(8):
            a(f'v_fmac_f32 v{d[k]}, v{f[k]}, v{t1}')
        for k in range(0, 8, 2):
            a(f'v_cvt_pk_bf16_f32 v{f[k]}, v{d[k]}, v{d[k + 1]}')
        for k in range(0, 8, 2):
            a(f'v_lshlrev_b32 v{d[k]}, 16, v{f[k]}')
            a(f'v_and_b32 v{d[k + 1]}, 0xffff0000, v{f[k]}')

    def poll(regs_list, addr_v, base_s, offs, lanes_mask=None):
        lbl = a.newlabel('L_poll')
        a.label(lbl)
        for b, o in zip(regs_list, offs):
            a(f'global_load_dwordx4 v[{b}:{b + 3}], v{addr_v}, {base_s} offset:{o} {XLD}')
        a.vm_wait_all()
        b = regs_list[0]
        a(f'v_max_u32 v{vX27}, v{b}, v{b + 1}')
        a(f'v_max3_u32 v{vX27}, v{vX27}, v{b + 2}, v{b + 3}')
        for b in regs_list[1:]:
            a(f'v_max3_u32 v{vX27}, v{vX27}, v{b}, v{b + 1}')
            a(f'v_max3_u32 v{vX27}, v{vX27}, v{b + 2}, v{b + 3}')
        a(f'v_cmp_eq_u32 vcc, -1, v{vX27}')
        a('s_sub_u32 s11, s11, 1')
        a('s_cbranch_scc1 L_end')
        a(f's_cbranch_vccnz {lbl}')

    def nosent(v):
        a(f'v_min_u32 v{v}, -2, v{v}')

    a('s_cmp_ge_u32 s2, 256')
    a('s_cbranch_scc1 L_end')
    a('s_load_dwordx16 s[16:31], s[0:1], 0')
    a('s_load_dwordx8 s[32:39], s[0:1], 64')
    a(f'v_lshrrev_b32 v{vT}, 6, v0')
    a(f'v_and_b32 v{vLANE}, 63, v0')
    a(f'v_readfirstlane_b32 s3, v{vT}')
    a(f'v_lshlrev_b32 v{vOFF}, 4, v{vLANE}')
    a('s_and_b32 s4, s2, 31')
    a('s_lshr_b32 s5, s2, 5')
    a('s_mov_b32 s8, 0x3fb8aa3b')
    a('s_mov_b32 s9, 0x3db504f3')
    a('s_mov_b32 s10, 0')
    a('s_mov_b32 s11, 400000')
    a('s_lshl_b32 s6, s4, 22')
    a('s_lshl_b32 s7, s5, 19')
    a('s_add_u32 s6, s6, s7')
    a('s_lshl_b32 s7, s3, 17')
    a('s_add_u32 s6, s6, s7')
    a('s_and_b32 s12, s2, 7')
    a('s_lshr_b32 s13, s2, 3')
    a('s_lshr_b32 s14, s13, 3')
    a('s_lshl_b32 s14, s14, 3')
    a('s_add_u32 s14, s14, s12')
    a('s_lshl_b32 s14, s14, 3')
    a('s_and_b32 s13, s13, 7')
    a('s_add_u32 s48, s14, s13')
    a('s_waitcnt lgkmcnt(0)')
    a('s_mov_b32 s40, s18')
    a('s_and_b32 s41, s19, 0xffff')
    a('s_mov_b32 s42, 0x8000000')
    a('s_mov_b32 s43, 0x20000')
    a('s_mov_b32 s44, s20')
    a('s_and_b32 s45, s21, 0xffff')
    a('s_mov_b32 s46, 0x8000000')
    a('s_mov_b32 s47, 0x20000')

    a(f'global_load_dwordx4 v[{vM[0]}:{vM[3]}], v{vOFF}, s[16:17]', tag='x')
    a('s_mul_i32 s12, s2, 12288')
    a('s_mul_i32 s13, s3, 3072')
    a('s_add_u32 s12, s12, s13')
    a('s_add_u32 s12, s38, s12')
    a('s_addc_u32 s13, s39, 0')
    for k in range(4):
        a(f'v_mov_b32 v{vO[k]}, -1')
    for k in range(3):
        a(f'global_store_dwordx4 v{vOFF}, v[{vO[0]}:{vO[3]}], s[12:13] offset:{k * 1024} {XST}', tag=f'clr{k}')

    a(f'v_and_b32 v{vT}, 15, v{vLANE}')
    a(f'v_lshlrev_b32 v{vT}, 18, v{vT}')
    a(f'v_lshrrev_b32 v{vU}, 4, v{vLANE}')
    a(f'v_lshlrev_b32 v{vU}, 4, v{vU}')
    a(f'v_add_u32 v{vT}, v{vT}, v{vU}')
    a('s_lshl_b32 s12, s4, 8')
    a('s_lshl_b32 s13, s3, 6')
    a('s_add_u32 s12, s12, s13')
    a(f'v_add_u32 v{vT}, s12, v{vT}')
    kv_arch = [VDATA0 + 4 * i for i in range(NKV)]
    v_ring = [VDATA0 + 4 * (NKV + i) for i in range(NVR)]
    wq_dst = v_ring + kv_arch[-7:]
    for n in range(32):
        a(f'global_load_dwordx4 {rq("v", wq_dst[n])}, v{vT}, s[22:23] {POL_W}', tag=f'wq{n}')
        if n < 31:
            a(f'v_add_u32 v{vT}, 0x2000, v{vT}')

    kloc = [('a', 4 * i) for i in range(NA)] + [('l', i) for i in range(LDSK)] + [('v', b) for b in kv_arch]
    assert len(kloc) == 128
    state = {'ks': None, 'vs': None, 'm0': None}

    def set_soff(off):
        hi = off & ~4095
        if state['ks'] != hi:
            a(f's_add_u32 s7, s6, {hi}')
            state['ks'] = hi
        return off & 4095

    a(f's_mul_i32 s49, s3, {LDSK * 1024}')
    a('s_add_u32 s49, s49, 4096')

    def issue_k(i):
        a.vm_room()
        kind, b = kloc[i]
        lo = set_soff(i * 1024)
        if kind == 'l':
            m0v = b * 1024 - lo
            if state['m0'] != m0v:
                a(f's_add_u32 m0, s49, {m0v}')
                state['m0'] = m0v
            a(f'buffer_load_dwordx4 v{vOFF}, s[40:43], s7 offen offset:{lo} {POL_KV} lds', tag=f'k{i}')
        else:
            a(f'buffer_load_dwordx4 {rq(kind, b)}, v{vOFF}, s[40:43], s7 offen offset:{lo} {POL_KV}', tag=f'k{i}')

    def issue_v(i, kind, b, tag):
        a.vm_room()
        lo = set_soff(i * 1024)
        a(f'buffer_load_dwordx4 {rq(kind, b)}, v{vOFF}, s[44:47], s7 offen offset:{lo} {POL_KV}', tag=tag)

    kn = [0]

    def issue_more_k(limit=62, upto=128):
        while kn[0] < upto and len(a.vm) < limit:
            issue_k(kn[0])
            kn[0] += 1

    issue_more_k(upto=NA + LDSK)

    a.vm_wait('x')
    f8 = vSC[0:8]
    d8 = vSC[8:16]
    layernorm(vM, f8, d8, vT, vU, vW_)
    a(f'v_lshlrev_b32 v{vT}, 5, v{vLANE}')
    a(f'ds_write_b128 v{vT}, v[{d8[0]}:{d8[3]}] offset:{XN}')
    a(f'ds_write_b128 v{vT}, v[{d8[4]}:{d8[7]}] offset:{XN + 16}')
    a(f'v_and_b32 v{vU}, 15, v{vLANE}')
    a(f'v_lshlrev_b32 v{vU}, 7, v{vU}')
    a('s_waitcnt lgkmcnt(0)')
    for k in range(8):
        a(f'v_mov_b32 v{vO[k]}, 0')
    for n4 in range(8):
        tq = vTMP[n4 & 1]
        a(f'ds_read_b128 v[{tq[0]}:{tq[3]}], v{vU} offset:{XN + 16 * n4}')
        a('s_waitcnt lgkmcnt(0)')
        for k in range(4):
            n = 4 * n4 + k
            a.vm_wait(f'wq{n}')
            issue_more_k(upto=NA + LDSK)
            a(f'v_lshrrev_b32 v{vPLO}, 16, v{tq[k]}')
            w = wq_dst[n]
            for d in range(4):
                a(f'v_dot2c_f32_bf16 v{vO[2 * d]}, v{w + d}, v{vPLO}')
                a(f'v_dot2c_f32_bf16 v{vO[2 * d + 1]}, v{w + d}, v{tq[k]}')
    for k in range(8):
        allreduce_row(vO[k])
    a(f'v_lshrrev_b32 v{vT}, 4, v{vLANE}')
    a(f'v_lshlrev_b32 v{vT}, 5, v{vT}')
    a('s_lshl_b32 s12, s3, 7')
    a(f'v_add_u32 v{vT}, s12, v{vT}')
    a(f'ds_write_b128 v{vT}, v[{vO[0]}:{vO[3]}] offset:{QL}')
    a(f'ds_write_b128 v{vT}, v[{vO[4]}:{vO[7]}] offset:{QL + 16}')
    a('s_waitcnt lgkmcnt(0)')
    a('s_barrier')
    lbl = a.newlabel('L_noatom')
    lbl2 = a.newlabel('L_noatom2')
    a('s_and_b32 s12, s2, 7')
    a('s_lshl_b32 s12, s12, 5')
    a(f'v_mov_b32 v{vT}, s12')
    a(f'v_mov_b32 v{vU}, 1')
    a.vm_room()
    a('s_mov_b64 exec, 1')
    a('s_cmp_lg_u32 s3, 0')
    a(f's_cbranch_scc1 {lbl}')
    a.raw(f'  global_atomic_add v{vT}, v{vU}, s[36:37]')
    a(f's_branch {lbl2}')
    a.label(lbl, pad=False)
    a(f'global_load_dword v55, v{vT}, s[36:37]', tag='atom')
    a.label(lbl2, pad=False)
    a('s_mov_b64 exec, -1')
    a(f'v_and_b32 v{vT}, 15, v{vLANE}')
    a(f'v_lshlrev_b32 v{vT}, 5, v{vT}')
    a(f'ds_read_b128 v[{vO[0]}:{vO[3]}], v{vT} offset:{QL}')
    a(f'ds_read_b128 v[{vO[4]}:{vO[7]}], v{vT} offset:{QL + 16}')
    a('s_waitcnt lgkmcnt(0)')
    for k in range(4):
        a(f'v_cvt_pk_bf16_f32 v{vQ[k]}, v{vO[2 * k]}, v{vO[2 * k + 1]}')
    dump([f'v{r}' for r in vQ], 'q1')

    BANKLANE = [0, 8, 4, 12]

    def k_quad_src(i, tmpsel, first_pass):
        kind, b = kloc[i]
        if kind == 'v':
            return quad(b)
        tq = tmpsel
        if kind == 'a':
            for d in range(4):
                a(f'v_accvgpr_read_b32 v{tq[d]}, a{b + d}')
            return tq
        a(f'ds_read_b128 v[{tq[0]}:{tq[3]}], v{vX27} offset:{b * 1024}')
        a('s_waitcnt lgkmcnt(0)')
        return tq

    def k_phase(first_pass, after_quad=None, tmps=vTMP):
        a(f'v_mov_b32 v{vMRUN}, 0xff800000')
        a(f'v_add_u32 v{vX27}, s49, v{vOFF}')
        for g in range(32):
            for j in range(4):
                i = 4 * g + j
                if first_pass:
                    a.vm_wait(f'k{i}')
                src = k_quad_src(i, tmps[i % len(tmps)], first_pass)
                a(f'v_dot2_f32_bf16 v{vA[j]}, v{src[0]}, v{vQ[0]}, 0')
                for d in range(1, 4):
                    a(f'v_dot2_f32_bf16 v{vA[j]}, v{src[d]}, v{vQ[d]}, v{vA[j]}')
                if after_quad:
                    after_quad(i)
            a(f'v_add_f32_dpp v{vT}, v{vA[0]}, v{vA[0]} row_ror:8 row_mask:0xf bank_mask:0x3')
            a(f'v_add_f32_dpp v{vU}, v{vA[2]}, v{vA[2]} row_ror:8 row_mask:0xf bank_mask:0x3')
            a(f'v_add_f32_dpp v{vT}, v{vA[1]}, v{vA[1]} row_ror:8 row_mask:0xf bank_mask:0xc')
            a(f'v_add_f32_dpp v{vU}, v{vA[3]}, v{vA[3]} row_ror:8 row_mask:0xf bank_mask:0xc')
            a(f'v_add_f32_dpp v{vW_}, v{vT}, v{vT} row_half_mirror row_mask:0xf bank_mask:0x5')
            a(f'v_add_f32_dpp v{vW_}, v{vU}, v{vU} row_half_mirror row_mask:0xf bank_mask:0xa')
            a(f'v_add_f32_dpp v{vW_}, v{vW_}, v{vW_} quad_perm:[1,0,3,2] row_mask:0xf bank_mask:0xf')
            a(f'v_add_f32_dpp v{vW_}, v{vW_}, v{vW_} quad_perm:[2,3,0,1] row_mask:0xf bank_mask:0xf')
            bf16r(vW_, vW_)
            if g % 2 == 0:
                a(f'v_mul_f32 v{vRA}, s9, v{vW_}')
                a(f'v_max_f32 v{vMRUN}, v{vMRUN}, v{vRA}')
            else:
                a(f'v_mul_f32 v{vW_}, s9, v{vW_}')
                a(f'v_max_f32 v{vMRUN}, v{vMRUN}, v{vW_}')
                a(f'v_cvt_pk_bf16_f32 v{vSC[g // 2]}, v{vRA}, v{vW_}')
        a(f'v_max_f32_dpp v{vMRUN}, v{vMRUN}, v{vMRUN} row_ror:4 row_mask:0xf bank_mask:0xf')
        a(f'v_max_f32_dpp v{vMRUN}, v{vMRUN}, v{vMRUN} row_ror:8 row_mask:0xf bank_mask:0xf')
        allreduce_x16(vMRUN, vT, 'max')
        allreduce_x32(vMRUN, vT, 'max')
        bf16r(vMRUN, vMRUN)
        a(f'v_mul_f32 v{vNEGM}, s8, v{vMRUN}')
        a(f'v_sub_f32 v{vNEGM}, 0, v{vNEGM}')
        a(f'v_mov_b32 v{vLACC}, 0')
        for k in range(8):
            a(f'v_mov_b32 v{vO[k]}, 0')

    def v_group_head(g):
        sc = vSC[g // 2]
        if g % 2 == 0:
            a(f'v_lshlrev_b32 v{vE}, 16, v{sc}')
        else:
            a(f'v_and_b32 v{vE}, 0xffff0000, v{sc}')
        a(f'v_fma_f32 v{vE}, v{vE}, s8, v{vNEGM}')
        a(f'v_exp_f32 v{vE}, v{vE}')
        a(f'v_add_f32 v{vLACC}, v{vLACC}, v{vE}')
        a(f'v_cvt_pk_bf16_f32 v{vPLO}, v{vE}, 0')
        a(f'v_lshlrev_b32 v{vPHI}, 16, v{vPLO}')

    def v_quad(j, src):
        bl = BANKLANE[j]
        for d in range(4):
            a(f'v_dot2c_f32_bf16_dpp v{vO[2 * d]}, v{vPLO}, v{src[d]} row_newbcast:{bl} row_mask:0xf bank_mask:0xf')
            a(f'v_dot2c_f32_bf16_dpp v{vO[2 * d + 1]}, v{vPHI}, v{src[d]} row_newbcast:{bl} row_mask:0xf bank_mask:0xf')

    SETA = [8, 12, 28, 32]
    SETB = [36, 40, 44, 48]

    def load_wo():
        a(f'v_lshrrev_b32 v{vT}, 4, v{vLANE}')
        a(f'v_lshlrev_b32 v{vT}, 10, v{vT}')
        a(f'v_and_b32 v{vU}, 15, v{vLANE}')
        a(f'v_lshlrev_b32 v{vU}, 4, v{vU}')
        a(f'v_add_u32 v{vT}, v{vT}, v{vU}')
        a('s_lshl_b32 s12, s4, 17')
        a('s_lshl_b32 s13, s5, 14')
        a('s_add_u32 s12, s12, s13')
        a('s_lshl_b32 s13, s3, 8')
        a('s_add_u32 s12, s12, s13')
        a(f'v_add_u32 v{vT}, s12, v{vT}')
        for j in range(4):
            a.vm_room()
            a(f'global_load_dwordx4 {rq("v", SETA[j])}, v{vT}, s[24:25] {POL_W}', tag=f'wo{j}')
            if j < 3:
                a(f'v_add_u32 v{vT}, 0x1000, v{vT}')

    def load_gu(n, which):
        a('s_min_u32 s12, s48, 171')
        a('s_lshl_b32 s12, s12, 4')
        a(f's_mul_i32 s13, s3, {128 * 2752}')
        a('s_add_u32 s12, s12, s13')
        a(f's_add_u32 s12, s12, {64 * n * 2752}')
        a(f'v_mul_u32_u24 v{vT}, 2752, v{vLANE}')
        a(f'v_add_u32 v{vT}, s12, v{vT}')
        a.vm_room()
        a(f'global_load_dwordx4 {rq("v", SETB[2 * which + n])}, v{vT}, {"s[28:29]" if which == 0 else "s[30:31]"} {POL_W}',
          tag=f'gu{which}{n}')

    vn = [0]

    def p1_after_k(i):
        issue_more_k()
        if kn[0] >= 128:
            while vn[0] < NVR and len(a.vm) < 62:
                issue_v(vn[0], 'v', v_ring[vn[0] % NVR], f'v{vn[0]}')
                vn[0] += 1

    issue_more_k()
    k_phase(True, p1_after_k)
    dump([f'v{r}' for r in vSC] + [f'v{vMRUN}'], 'scores1')
    load_wo()
    for g in range(32):
        v_group_head(g)
        for j in range(4):
            i = 4 * g + j
            a.vm_wait(f'v{i}')
            v_quad(j, quad(v_ring[i % NVR]))
            if vn[0] < 128:
                issue_v(vn[0], 'v', v_ring[vn[0] % NVR], f'v{vn[0]}')
                vn[0] += 1
        if g in (7, 15, 23, 31):
            k = g // 8
            load_gu(k & 1, k >> 1)
    a.label('L_chain')
    a.vm = ['pending']
    a(f's_mul_i32 s12, s10, {ARENA_T}')
    a('s_add_u32 s14, s38, s12')
    a('s_addc_u32 s15, s39, 0')

    def row_reduce8(o):
        for k in range(4):
            a(f'v_permlane32_swap_b32 v{o[k]}, v{o[k + 4]}')
        for k in range(4):
            a(f'v_add_f32 v{o[k]}, v{o[k]}, v{o[k + 4]}')
        for k in range(2):
            a(f'v_permlane16_swap_b32 v{o[k]}, v{o[k + 2]}')
        for k in range(2):
            a(f'v_add_f32 v{o[k]}, v{o[k]}, v{o[k + 2]}')

    row_reduce8(vO)
    a(f'v_add_f32_dpp v{vLACC}, v{vLACC}, v{vLACC} row_ror:4 row_mask:0xf bank_mask:0xf')
    a(f'v_add_f32_dpp v{vLACC}, v{vLACC}, v{vLACC} row_ror:8 row_mask:0xf bank_mask:0xf')
    allreduce_x16(vLACC, vT)
    allreduce_x32(vLACC, vT)
    a(f'v_and_b32 v{vT}, 15, v{vLANE}')
    a(f'v_lshlrev_b32 v{vT}, 5, v{vT}')
    a(f'v_lshrrev_b32 v{vU}, 4, v{vLANE}')
    a(f'v_lshlrev_b32 v{vU}, 3, v{vU}')
    a(f'v_add_u32 v{vT}, v{vT}, v{vU}')
    a('s_lshl_b32 s12, s3, 9')
    a(f'v_add_u32 v{vT}, s12, v{vT}')
    a(f'ds_write_b64 v{vT}, v[{vO[0]}:{vO[1]}] offset:{OW}')
    a('s_lshl_b32 s12, s3, 3')
    a(f'v_mov_b32 v{vT}, s12')
    a(f'v_mov_b32 v{vO[2]}, v{vMRUN}')
    a(f'v_mov_b32 v{vO[3]}, v{vLACC}')
    a(f'ds_write_b64 v{vT}, v[{vO[2]}:{vO[3]}] offset:{ML}')
    a('s_waitcnt lgkmcnt(0)')
    a('s_barrier')
    lbl_nw0 = a.newlabel('L_nw0')
    a('s_cmp_lg_u32 s3, 0')
    a(f's_cbranch_scc1 {lbl_nw0}')
    lbl_chk = a.newlabel('L_chk')
    lbl_chkd = a.newlabel('L_chkd')
    a('s_cmp_lg_u32 s10, 0')
    a(f's_cbranch_scc1 {lbl_chkd}')
    a(f'v_and_b32 v{vT}, 7, v{vLANE}')
    a(f'v_lshlrev_b32 v{vT}, 5, v{vT}')
    a.label(lbl_chk)
    a(f'global_load_dword v{vU}, v{vT}, s[36:37] {XLD}')
    a.vm_wait_all()
    a(f'v_cmp_ne_u32 vcc, 32, v{vU}')
    a('s_sub_u32 s11, s11, 1')
    a('s_cbranch_scc1 L_end')
    a(f's_cbranch_vccnz {lbl_chk}')
    a.label(lbl_chkd)
    a(f'v_lshlrev_b32 v{vT}, 3, v{vLANE}')
    a(f'v_mov_b32 v{vU}, 0')
    for w in range(4):
        a(f'ds_read_b64 v[{16 + 2 * w}:{17 + 2 * w}], v{vT} offset:{OW + 512 * w}')
    a(f'ds_read_b128 v[{vM[0]}:{vM[3]}], v{vU} offset:{ML}')
    a(f'ds_read_b128 v[{vE}:{vX27}], v{vU} offset:{ML + 16}')
    a('s_waitcnt lgkmcnt(0)')
    mregs = [52, 54, 24, 26]
    lregs = [53, 55, 25, 27]
    a(f'v_max_f32 v{vT}, v{mregs[0]}, v{mregs[1]}')
    a(f'v_max3_f32 v{vT}, v{vT}, v{mregs[2]}, v{mregs[3]}')
    for w in range(4):
        a(f'v_sub_f32 v{mregs[w]}, v{mregs[w]}, v{vT}')
        a(f'v_mul_f32 v{mregs[w]}, s8, v{mregs[w]}')
        a(f'v_exp_f32 v{mregs[w]}, v{mregs[w]}')
    a(f'v_mov_b32 v6, v{vT}')
    a(f'v_mul_f32 v4, v16, v{mregs[0]}')
    a(f'v_mul_f32 v5, v17, v{mregs[0]}')
    a(f'v_mul_f32 v7, v{lregs[0]}, v{mregs[0]}')
    for w in range(1, 4):
        a(f'v_fmac_f32 v4, v{16 + 2 * w}, v{mregs[w]}')
        a(f'v_fmac_f32 v5, v{17 + 2 * w}, v{mregs[w]}')
        a(f'v_fmac_f32 v7, v{lregs[w]}, v{mregs[w]}')
    for r in (4, 5, 6, 7):
        nosent(r)
    a(f'v_lshrrev_b32 v16, 3, v{vLANE}')
    a('v_lshlrev_b32 v16, 15, v16')
    a(f'v_and_b32 v17, 7, v{vLANE}')
    a('v_lshlrev_b32 v17, 4, v17')
    a('v_add_u32 v16, v16, v17')
    a('s_lshl_b32 s12, s4, 10')
    a('s_lshl_b32 s13, s5, 7')
    a('s_add_u32 s12, s12, s13')
    a(f's_add_u32 s12, s12, {A_X1}')
    a('v_add_u32 v16, s12, v16')
    a(f'global_store_dwordx4 v16, v[4:7], s[14:15] {XST}')
    a.label(lbl_nw0)
    a('s_lshl_b32 s12, s2, 10')
    a(f's_add_u32 s12, s12, {A_X1}')
    a(f'v_add_u32 v{vT}, s12, v{vOFF}')
    poll([16], vT, 's[14:15]', [0])
    a('v_mov_b32 v20, v18')
    a('v_max_f32_dpp v20, v20, v20 row_ror:8 row_mask:0xf bank_mask:0xf')
    allreduce_x16(20, 21, 'max')
    allreduce_x32(20, 21, 'max')
    a('v_sub_f32 v18, v18, v20')
    a('v_mul_f32 v18, s8, v18')
    a('v_exp_f32 v18, v18')
    a('v_mul_f32 v16, v16, v18')
    a('v_mul_f32 v17, v17, v18')
    a('v_mul_f32 v19, v19, v18')
    for r in (16, 17, 19):
        a(f'v_add_f32_dpp v{r}, v{r}, v{r} row_ror:8 row_mask:0xf bank_mask:0xf')
    for r in (16, 17, 19):
        allreduce_x16(r, 21)
    for r in (16, 17, 19):
        allreduce_x32(r, 21)
    a('v_rcp_f32 v20, v19')
    a('v_mul_f32 v21, v16, v20')
    a('v_mul_f32 v22, v17, v20')
    a('v_fma_f32 v16, -v21, v19, v16')
    a('v_fma_f32 v17, -v22, v19, v17')
    a('v_fmac_f32 v21, v16, v20')
    a('v_fmac_f32 v22, v17, v20')
    a('v_cvt_pk_bf16_f32 v24, v21, v22')
    dump(['v24'], 'o16')

    def gemv_rows(nq, setq, pairreg, acc, sh):
        for k in range(8):
            a(f'v_mov_b32 v{acc[k]}, 0')
        for j in range(nq):
            a(f'v_mov_b32_dpp v25, v{pairreg} row_newbcast:{2 * j} row_mask:0x3 bank_mask:0xf')
            a(f'v_mov_b32_dpp v25, v{pairreg} row_newbcast:{2 * j + 1} row_mask:0xc bank_mask:0xf')
            a(f'v_lshrrev_b32 v25, v{sh}, v25')
            a('v_lshlrev_b32 v26, 16, v25')
            a('v_and_b32 v25, 0xffff, v25')
            for d in range(4):
                a(f'v_dot2c_f32_bf16 v{acc[2 * d]}, v{setq[j] + d}, v25')
                a(f'v_dot2c_f32_bf16 v{acc[2 * d + 1]}, v{setq[j] + d}, v26')

    def publish_rs(acc, area, prod_s):
        for k in range(4):
            a(f'v_permlane16_swap_b32 v{acc[k]}, v{acc[k + 4]}')
        for k in range(4):
            a(f'v_add_f32 v{acc[k]}, v{acc[k]}, v{acc[k + 4]}')
        for k in range(4):
            allreduce_x32(acc[k], acc[k + 4])
        for k in range(4):
            nosent(acc[k])
        a(f'v_and_b32 v{vT}, 15, v{vLANE}')
        a(f'v_lshlrev_b32 v{vT}, 13, v{vT}')
        a(f'v_lshrrev_b32 v{vU}, 4, v{vLANE}')
        a(f'v_lshlrev_b32 v{vU}, 4, v{vU}')
        a(f'v_add_u32 v{vT}, v{vT}, v{vU}')
        a('s_lshl_b32 s12, s3, 17')
        a(f's_lshl_b32 s13, {prod_s}, 5')
        a('s_add_u32 s12, s12, s13')
        a(f's_add_u32 s12, s12, {area}')
        a(f'v_add_u32 v{vT}, s12, v{vT}')
        a('s_mov_b32 exec_hi, 0')
        a(f'global_store_dwordx4 v{vT}, v[{acc[0]}:{acc[3]}], s[14:15] {XST}')
        a('s_mov_b64 exec, -1')

    a(f'v_lshrrev_b32 v2, 4, v{vLANE}')
    a('v_and_b32 v2, 1, v2')
    a('v_lshlrev_b32 v2, 4, v2')
    gemv_rows(4, SETA, 24, vO, 2)
    publish_rs(vO, A_RS1, 's2')
    a('s_min_u32 s12, s48, 171')
    a('s_lshl_b32 s12, s12, 13')
    a('s_lshl_b32 s13, s3, 8')
    a('s_add_u32 s12, s12, s13')
    a(f'v_lshrrev_b32 v{vT}, 4, v{vLANE}')
    a(f'v_lshlrev_b32 v{vT}, 10, v{vT}')
    a(f'v_and_b32 v{vU}, 15, v{vLANE}')
    a(f'v_lshlrev_b32 v{vU}, 4, v{vU}')
    a(f'v_add_u32 v{vT}, v{vT}, v{vU}')
    a(f'v_add_u32 v{vT}, s12, v{vT}')
    a(f'global_load_dwordx4 {rq("v", SETA[0])}, v{vT}, s[32:33] {POL_W}')
    a(f'v_add_u32 v{vT}, 0x1000, v{vT}')
    a(f'global_load_dwordx4 {rq("v", SETA[1])}, v{vT}, s[32:33] {POL_W}')

    def rs_consume(area, nprod, ag_area, final):
        lbl_skip = a.newlabel('L_nocons')
        a('s_cmp_ge_u32 s2, 64')
        a(f's_cbranch_scc1 {lbl_skip}')
        a('s_lshl_b32 s12, s2, 13')
        a('s_lshl_b32 s13, s3, 11')
        a('s_add_u32 s12, s12, s13')
        a(f's_add_u32 s12, s12, {area}')
        a(f'v_add_u32 v{vT}, s12, v{vOFF}')
        if nprod < 256:
            for r in range(16, 24):
                a(f'v_mov_b32 v{r}, 0')
            a(f'v_lshrrev_b32 v{vU}, 1, v{vLANE}')
            a('s_lshl_b32 s13, s3, 6')
            a(f'v_add_u32 v{vU}, s13, v{vU}')
            a(f'v_cmp_gt_u32 s[50:51], {nprod}, v{vU}' if nprod <= 64 else f'v_mov_b32 v{vW_}, {nprod}')
            a(f'v_cmp_lt_u32 s[50:51], v{vU}, v{vW_}')
            a(f'v_add_u32 v{vU}, 32, v{vU}')
            a(f'v_cmp_lt_u32 s[52:53], v{vU}, v{vW_}')
            lbl = a.newlabel('L_poll')
            l0 = a.newlabel('L_s')
            l1 = a.newlabel('L_s')
            a.label(lbl)
            a('s_mov_b64 exec, s[50:51]')
            a(f's_cbranch_execz {l0}')
            a(f'global_load_dwordx4 v[16:19], v{vT}, s[14:15] {XLD}')
            a.label(l0, pad=False)
            a('s_mov_b64 exec, s[52:53]')
            a(f's_cbranch_execz {l1}')
            a(f'global_load_dwordx4 v[20:23], v{vT}, s[14:15] offset:1024 {XLD}')
            a.label(l1, pad=False)
            a('s_mov_b64 exec, -1')
            a.vm_wait_all()
            a(f'v_max_u32 v{vX27}, v16, v17')
            a(f'v_max3_u32 v{vX27}, v{vX27}, v18, v19')
            a(f'v_max3_u32 v{vX27}, v{vX27}, v20, v21')
            a(f'v_max3_u32 v{vX27}, v{vX27}, v22, v23')
            a(f'v_cmp_eq_u32 vcc, -1, v{vX27}')
            a('s_sub_u32 s11, s11, 1')
            a('s_cbranch_scc1 L_end')
            a(f's_cbranch_vccnz {lbl}')
        else:
            poll([16, 20], vT, 's[14:15]', [0, 1024])
        for k in range(4):
            a(f'v_add_f32 v{16 + k}, v{16 + k}, v{20 + k}')
        for k in range(4):
            r = 16 + k
            a(f'v_add_f32_dpp v{r}, v{r}, v{r} row_ror:8 row_mask:0xf bank_mask:0xf')
        for k in range(4):
            r = 16 + k
            a(f'v_add_f32_dpp v{r}, v{r}, v{r} row_ror:4 row_mask:0xf bank_mask:0xf')
        for k in range(4):
            r = 16 + k
            a(f'v_add_f32_dpp v{r}, v{r}, v{r} row_ror:2 row_mask:0xf bank_mask:0xf')
        for k in range(4):
            allreduce_x16(16 + k, 20 + k)
        for k in range(4):
            allreduce_x32(16 + k, 20 + k)
        a(f'v_and_b32 v{vT}, 1, v{vLANE}')
        a(f'v_lshlrev_b32 v{vT}, 4, v{vT}')
        a('s_lshl_b32 s12, s3, 5')
        a(f'v_add_u32 v{vT}, s12, v{vT}')
        a(f'ds_write_b128 v{vT}, v[16:19] offset:{RP}')
        a('s_waitcnt lgkmcnt(0)')
        a('s_barrier')
        a('s_cmp_lg_u32 s3, 0')
        a(f's_cbranch_scc1 {lbl_skip}')
        a(f'v_mov_b32 v{vT}, 0')
        a(f'ds_read_b128 v[16:19], v{vT} offset:{RP}')
        a(f'ds_read_b128 v[20:23], v{vT} offset:{RP + 16}')
        for w in range(1, 4):
            a(f'ds_read_b128 v[24:27], v{vT} offset:{RP + 32 * w}')
            a(f'ds_read_b128 v[52:55], v{vT} offset:{RP + 32 * w + 16}')
            a('s_waitcnt lgkmcnt(0)')
            for k in range(4):
                a(f'v_add_f32 v{16 + k}, v{16 + k}, v{24 + k}')
                a(f'v_add_f32 v{20 + k}, v{20 + k}, v{52 + k}')
        for k in range(4):
            a(f'v_cvt_pk_bf16_f32 v{24 + k}, v{16 + 2 * k}, v{17 + 2 * k}')
        for k in range(4):
            a(f'v_lshlrev_b32 v{16 + 2 * k}, 16, v{24 + k}')
            a(f'v_and_b32 v{17 + 2 * k}, 0xffff0000, v{24 + k}')
            a(f'v_lshlrev_b32 v52, 16, v{32 + k}')
            a(f'v_and_b32 v53, 0xffff0000, v{32 + k}')
            a(f'v_add_f32 v{16 + 2 * k}, v{16 + 2 * k}, v52')
            a(f'v_add_f32 v{17 + 2 * k}, v{17 + 2 * k}, v53')
        for k in range(4):
            a(f'v_cvt_pk_bf16_f32 v{32 + k}, v{16 + 2 * k}, v{17 + 2 * k}')
        if final:
            lbl_nf = a.newlabel('L_notfinal')
            a('s_cmp_eq_u32 s10, 0')
            a(f's_cbranch_scc1 {lbl_nf}')
            a('s_lshl_b32 s12, s2, 4')
            a(f'v_mov_b32 v{vT}, s12')
            a('s_mov_b64 exec, 1')
            a(f'global_store_dwordx4 v{vT}, v[32:35], s[34:35]')
            a('s_mov_b64 exec, -1')
            a('s_branch L_end')
            a.label(lbl_nf)
        for k in range(4):
            a(f'v_min_u32 v{16 + k}, -2, v{32 + k}')
        a(f'v_lshlrev_b32 v{vT}, 10, v{vLANE}')
        a('s_lshl_b32 s12, s2, 4')
        a(f's_add_u32 s12, s12, {ag_area}')
        a(f'v_add_u32 v{vT}, s12, v{vT}')
        a('s_mov_b64 exec, 0xff')
        a(f'global_store_dwordx4 v{vT}, v[16:19], s[14:15] {XST}')
        a('s_mov_b64 exec, -1')
        a.label(lbl_skip)

    def ag_ln(ag_area):
        lbl = a.newlabel('L_agskip')
        a('s_cmp_lg_u32 s3, 0')
        a(f's_cbranch_scc1 {lbl}')
        a('s_and_b32 s12, s2, 7')
        a('s_lshl_b32 s12, s12, 10')
        a(f's_add_u32 s12, s12, {ag_area}')
        a(f'v_add_u32 v{vT}, s12, v{vOFF}')
        poll([52], vT, 's[14:15]', [0])
        layernorm(vM, list(range(16, 24)), [24, 25, 26, 27, 28, 29, 30, 31], vT, vU, vW_)
        a(f'v_lshlrev_b32 v{vT}, 5, v{vLANE}')
        a(f'ds_write_b128 v{vT}, v[24:27] offset:{XN}')
        a(f'ds_write_b128 v{vT}, v[28:31] offset:{XN + 16}')
        a('s_waitcnt lgkmcnt(0)')
        a.label(lbl)
        a('s_barrier')

    lbl = a.newlabel('L_res')
    lbl2 = a.newlabel('L_res2')
    a('s_and_b32 s12, s2, 63')
    a('s_lshl_b32 s12, s12, 4')
    a(f'v_mov_b32 v{vT}, s12')
    a('s_cmp_lg_u32 s10, 0')
    a(f's_cbranch_scc1 {lbl}')
    a(f'global_load_dwordx4 v[32:35], v{vT}, s[16:17]')
    a(f's_branch {lbl2}')
    a.label(lbl)
    a(f'v_add_u32 v{vT}, {A_AG2}, v{vT}')
    a(f'global_load_dwordx4 v[32:35], v{vT}, s[38:39] {XLD}')
    a.label(lbl2)

    rs_consume(A_RS1, 256, A_AG1, False)
    ag_ln(A_AG1)

    lbl_noglu = a.newlabel('L_noglu')
    a('s_cmp_ge_u32 s48, 172')
    a(f's_cbranch_scc1 {lbl_noglu}')
    a(f'v_lshlrev_b32 v{vT}, 2, v{vLANE}')
    a('s_lshl_b32 s12, s3, 9')
    a(f'v_add_u32 v{vT}, s12, v{vT}')
    a(f'ds_read_b32 v24, v{vT} offset:{XN}')
    a(f'ds_read_b32 v25, v{vT} offset:{XN + 256}')
    a.vm_wait_all()
    a('s_waitcnt lgkmcnt(0)')
    a('v_lshrrev_b32 v26, 16, v24')
    a('v_lshrrev_b32 v27, 16, v25')
    resr = []
    for which in range(2):
        for k in range(8):
            a(f'v_mov_b32 v{16 + k}, 0')
        for n in range(2):
            w = SETB[2 * which + n]
            for d in range(4):
                a(f'v_dot2c_f32_bf16 v{16 + 2 * d}, v{w + d}, v{26 + n}')
                a(f'v_dot2c_f32_bf16 v{17 + 2 * d}, v{w + d}, v{24 + n}')
        for k in range(4):
            a(f'v_permlane32_swap_b32 v{16 + k}, v{20 + k}')
        for k in range(4):
            a(f'v_add_f32 v{16 + k}, v{16 + k}, v{20 + k}')
        for k in range(2):
            a(f'v_permlane16_swap_b32 v{16 + k}, v{18 + k}')
        for k in range(2):
            a(f'v_add_f32 v{16 + k}, v{16 + k}, v{18 + k}')
        dst = 52 + which
        a(f'v_add_f32_dpp v{dst}, v16, v16 row_ror:8 row_mask:0xf bank_mask:0x3')
        a(f'v_add_f32_dpp v{dst}, v17, v17 row_ror:8 row_mask:0xf bank_mask:0xc')
        a(f'v_add_f32_dpp v{dst}, v{dst}, v{dst} row_half_mirror row_mask:0xf bank_mask:0xf')
        a(f'v_add_f32_dpp v{dst}, v{dst}, v{dst} quad_perm:[1,0,3,2] row_mask:0xf bank_mask:0xf')
        a(f'v_add_f32_dpp v{dst}, v{dst}, v{dst} quad_perm:[2,3,0,1] row_mask:0xf bank_mask:0xf')
    a(f'v_lshrrev_b32 v{vT}, 3, v{vLANE}')
    a(f'v_lshlrev_b32 v{vT}, 4, v{vT}')
    a('s_lshl_b32 s12, s3, 2')
    a(f'v_add_u32 v{vT}, s12, v{vT}')
    a(f'ds_write_b32 v{vT}, v52 offset:{GP}')
    a(f'ds_write_b32 v{vT}, v53 offset:{GP + 128}')
    a(f'v_and_b32 v{vT}, 31, v{vLANE}')
    a(f'v_lshlrev_b32 v{vT}, 13, v{vT}')
    a(f'v_lshrrev_b32 v{vU}, 5, v{vLANE}')
    a(f'v_lshlrev_b32 v{vU}, 4, v{vU}')
    a(f'v_add_u32 v{vT}, v{vT}, v{vU}')
    a('s_lshl_b32 s12, s4, 8')
    a('s_lshl_b32 s13, s5, 5')
    a('s_add_u32 s12, s12, s13')
    a('s_lshl_b32 s13, s3, 20')
    a('s_add_u32 s12, s12, s13')
    a(f'v_add_u32 v{vT}, s12, v{vT}')
    for n in range(4):
        a(f'global_load_dwordx4 {rq("v", SETB[n])}, v{vT}, s[22:23] {POL_W}')
        if n < 3:
            a(f'v_add_u32 v{vT}, 0x40000, v{vT}')
    a('s_waitcnt lgkmcnt(0)')
    a('s_barrier')
    a(f'v_and_b32 v{vT}, 3, v{vLANE}')
    a(f'v_lshlrev_b32 v{vT}, 5, v{vT}')
    a(f'ds_read_b128 v[16:19], v{vT} offset:{GP}')
    a(f'ds_read_b128 v[20:23], v{vT} offset:{GP + 16}')
    a(f'ds_read_b128 v[24:27], v{vT} offset:{GP + 128}')
    a(f'ds_read_b128 v[52:55], v{vT} offset:{GP + 144}')
    a('s_waitcnt lgkmcnt(0)')
    for b in (16, 20, 24, 52):
        a(f'v_add_f32 v{b}, v{b}, v{b + 1}')
        a(f'v_add_f32 v{b + 2}, v{b + 2}, v{b + 3}')
        a(f'v_add_f32 v{b}, v{b}, v{b + 2}')
    a('v_cvt_pk_bf16_f32 v17, v16, v20')
    a('v_cvt_pk_bf16_f32 v18, v24, v52')
    a('v_lshlrev_b32 v16, 16, v17')
    a('v_and_b32 v20, 0xffff0000, v17')
    a('v_lshlrev_b32 v24, 16, v18')
    a('v_and_b32 v52, 0xffff0000, v18')
    for r in (16, 20):
        a(f'v_mul_f32 v{r}, s8, v{r}')
        a(f'v_exp_f32 v{r}, -v{r}')
        a(f'v_add_f32 v{r}, 1.0, v{r}')
        a(f'v_rcp_f32 v{r}, v{r}')
    a('v_cvt_pk_bf16_f32 v17, v16, v20')
    a('v_lshlrev_b32 v16, 16, v17')
    a('v_and_b32 v20, 0xffff0000, v17')
    a('v_mul_f32 v16, v16, v24')
    a('v_mul_f32 v20, v20, v52')
    a('v_cvt_pk_bf16_f32 v24, v16, v20')
    dump(['v24'], 'h')
    gemv_rows(2, SETA, 24, vO, 2)
    publish_rs(vO, A_RS2, 's48')
    a.label(lbl_noglu)
    rs_consume(A_RS2, 172, A_AG2, True)
    a('s_cmp_lg_u32 s10, 0')
    a('s_cbranch_scc1 L_end')
    lbl_hasq = a.newlabel('L_hasq')
    a('s_cmp_lt_u32 s48, 172')
    a(f's_cbranch_scc1 {lbl_hasq}')
    a(f'v_and_b32 v{vT}, 31, v{vLANE}')
    a(f'v_lshlrev_b32 v{vT}, 13, v{vT}')
    a(f'v_lshrrev_b32 v{vU}, 5, v{vLANE}')
    a(f'v_lshlrev_b32 v{vU}, 4, v{vU}')
    a(f'v_add_u32 v{vT}, v{vT}, v{vU}')
    a('s_lshl_b32 s12, s4, 8')
    a('s_lshl_b32 s13, s5, 5')
    a('s_add_u32 s12, s12, s13')
    a('s_lshl_b32 s13, s3, 20')
    a('s_add_u32 s12, s12, s13')
    a(f'v_add_u32 v{vT}, s12, v{vT}')
    for n in range(4):
        a(f'global_load_dwordx4 {rq("v", SETB[n])}, v{vT}, s[22:23] {POL_W}')
        if n < 3:
            a(f'v_add_u32 v{vT}, 0x40000, v{vT}')
    a.label(lbl_hasq)
    ag_ln(A_AG2)
    a(f'v_and_b32 v{vT}, 31, v{vLANE}')
    a(f'v_lshlrev_b32 v{vT}, 2, v{vT}')
    a('s_lshl_b32 s12, s3, 9')
    a(f'v_add_u32 v{vT}, s12, v{vT}')
    for n in range(4):
        a(f'ds_read_b32 v{24 + n}, v{vT} offset:{XN + 128 * n}')
    for k in range(8):
        a(f'v_mov_b32 v{16 + k}, 0')
    a.vm_wait_all()
    a('s_waitcnt lgkmcnt(0)')
    for n in range(4):
        a(f'v_lshrrev_b32 v{52 + n}, 16, v{24 + n}')
    for n in range(4):
        w = SETB[n]
        for d in range(4):
            a(f'v_dot2c_f32_bf16 v{16 + 2 * d}, v{w + d}, v{52 + n}')
            a(f'v_dot2c_f32_bf16 v{17 + 2 * d}, v{w + d}, v{24 + n}')
    for k in range(4):
        a(f'v_permlane16_swap_b32 v{16 + k}, v{20 + k}')
    for k in range(4):
        a(f'v_add_f32 v{16 + k}, v{16 + k}, v{20 + k}')
    a('v_add_f32_dpp v20, v16, v16 row_ror:8 row_mask:0xf bank_mask:0x3')
    a('v_add_f32_dpp v21, v17, v17 row_ror:8 row_mask:0xf bank_mask:0x3')
    a('v_add_f32_dpp v20, v18, v18 row_ror:8 row_mask:0xf bank_mask:0xc')
    a('v_add_f32_dpp v21, v19, v19 row_ror:8 row_mask:0xf bank_mask:0xc')
    a('v_add_f32_dpp v22, v20, v20 row_half_mirror row_mask:0xf bank_mask:0x5')
    a('v_add_f32_dpp v22, v21, v21 row_half_mirror row_mask:0xf bank_mask:0xa')
    a('v_add_f32_dpp v22, v22, v22 quad_perm:[1,0,3,2] row_mask:0xf bank_mask:0xf')
    a('v_add_f32_dpp v22, v22, v22 quad_perm:[2,3,0,1] row_mask:0xf bank_mask:0xf')
    a(f'v_lshrrev_b32 v{vT}, 2, v{vLANE}')
    a(f'v_lshlrev_b32 v{vT}, 4, v{vT}')
    a('s_lshl_b32 s12, s3, 2')
    a(f'v_add_u32 v{vT}, s12, v{vT}')
    a(f'ds_write_b32 v{vT}, v22 offset:{QP}')
    a('s_waitcnt lgkmcnt(0)')
    a('s_barrier')
    lbl = a.newlabel('L_nq')
    a('s_cmp_lg_u32 s3, 0')
    a(f's_cbranch_scc1 {lbl}')
    a(f'v_and_b32 v{vT}, 7, v{vLANE}')
    a(f'v_lshlrev_b32 v{vT}, 5, v{vT}')
    a(f'ds_read_b128 v[16:19], v{vT} offset:{QP}')
    a(f'ds_read_b128 v[20:23], v{vT} offset:{QP + 16}')
    a('s_waitcnt lgkmcnt(0)')
    for b in (16, 20):
        a(f'v_add_f32 v{b}, v{b}, v{b + 1}')
        a(f'v_add_f32 v{b + 2}, v{b + 2}, v{b + 3}')
        a(f'v_add_f32 v{b}, v{b}, v{b + 2}')
    a('v_cvt_pk_bf16_f32 v16, v16, v20')
    nosent(16)
    a(f'v_lshlrev_b32 v{vT}, 2, v{vLANE}')
    a('s_lshl_b32 s12, s4, 8')
    a('s_lshl_b32 s13, s5, 5')
    a('s_add_u32 s12, s12, s13')
    a(f's_add_u32 s12, s12, {A_X4}')
    a(f'v_add_u32 v{vT}, s12, v{vT}')
    a('s_mov_b64 exec, 0xff')
    a(f'global_store_dword v{vT}, v16, s[14:15] {XST}')
    a('s_mov_b64 exec, -1')
    a.label(lbl)
    a(f'v_and_b32 v{vT}, 15, v{vLANE}')
    a(f'v_lshlrev_b32 v{vT}, 4, v{vT}')
    a('s_lshl_b32 s12, s4, 8')
    a(f's_add_u32 s12, s12, {A_X4}')
    a(f'v_add_u32 v{vT}, s12, v{vT}')
    poll([vQ[0]], vT, 's[14:15]', [0])
    dump([f'v{r}' for r in vQ], 'q2')

    a.vm = []
    state['ks'] = None
    NNR = 128 - NVR
    free_dst = []
    p2 = {'vn': 0}
    vdst = {}
    tmpV = [quad(kv_arch[0]), quad(kv_arch[1])]

    def p2_after_k(i):
        kind, b = kloc[i]
        if kind == 'a' or (kind == 'v' and b not in (kv_arch[0], kv_arch[1])):
            free_dst.append((kind, b))
        while p2['vn'] < NNR and free_dst and len(a.vm) < 62:
            d = free_dst.pop(0)
            vdst[p2['vn']] = d
            issue_v(p2['vn'], d[0], d[1], f'w{p2["vn"]}')
            p2['vn'] += 1

    k_phase(False, p2_after_k)
    dump([f'v{r}' for r in vSC] + [f'v{vMRUN}'], 'scores2')
    load_wo()
    first_res_group = (NNR + 3) // 4
    order = list(range(first_res_group, 32)) + list(range(0, first_res_group))
    done_groups = set()
    for g in order:
        v_group_head(g)
        for j in range(4):
            i = 4 * g + j
            if i >= NNR:
                src = quad(v_ring[i % NVR])
                v_quad(j, src)
                free_dst.append(('v', v_ring[i % NVR]))
            else:
                a.vm_wait(f'w{i}')
                kind, b = vdst[i]
                if kind == 'a':
                    tq = tmpV[i & 1]
                    for d in range(4):
                        a(f'v_accvgpr_read_b32 v{tq[d]}, a{b + d}')
                    src = tq
                else:
                    src = quad(b)
                v_quad(j, src)
            while p2['vn'] < NNR and free_dst and len(a.vm) < 62:
                d = free_dst.pop(0)
                vdst[p2['vn']] = d
                issue_v(p2['vn'], d[0], d[1], f'w{p2["vn"]}')
                p2['vn'] += 1
        done_groups.add(g)
        for k in range(4):
            if all(x in done_groups for x in range(8 * k, 8 * k + 8)) and ('gu', k) not in done_groups:
                done_groups.add(('gu', k))
                load_gu(k & 1, k >> 1)
    a('s_mov_b32 s10, 1')
    a('s_branch L_chain')

    a.label('L_end', pad=False)
    a('s_endpgm')
    R('.section .rodata,"a"')
    R('.p2align 6')
    R(f'.amdhsa_kernel {NAME}')
    R('  .amdhsa_next_free_vgpr 512')
    R('  .amdhsa_next_free_sgpr 102')
    R('  .amdhsa_accum_offset 256')
    R('  .amdhsa_group_segment_fixed_size 0')
    R('  .amdhsa_kernarg_size 96')
    R('  .amdhsa_user_sgpr_count 2')
    R('  .amdhsa_user_sgpr_kernarg_segment_ptr 1')
    R('  .amdhsa_system_sgpr_workgroup_id_x 1')
    R('.end_amdhsa_kernel')
    return a.text()


if __name__ == '__main__':
    debug = '--debug' in sys.argv
    out = [x for x in sys.argv[1:] if not x.startswith('--')]
    path = out[0] if out else 'interleave_layers__gqa_block_cached__glu_gated_glu__decode.s'
    open(path, 'w').write(gen(debug=debug))
    print('wrote', path)
```

```python
import re

TRANS = ('v_exp_f32', 'v_log_f32', 'v_rcp_f32', 'v_rsq_f32', 'v_sqrt_f32', 'v_sin_f32', 'v_cos_f32')


def expand(tok):
    tok = tok.strip()
    tok = tok.lstrip('-')
    m = re.match(r'^abs\((.*)\)$', tok)
    if m:
        tok = m.group(1)
    m = re.match(r'^([vas])\[(\d+):(\d+)\]$', tok)
    if m:
        return [f'{m.group(1)}{i}' for i in range(int(m.group(2)), int(m.group(3)) + 1)]
    m = re.match(r'^([vas])(\d+)$', tok)
    if m:
        return [tok]
    if tok in ('vcc', 'exec', 'm0', 'scc'):
        return [tok]
    if tok in ('vcc_lo', 'vcc_hi'):
        return ['vcc']
    if tok in ('exec_lo', 'exec_hi'):
        return ['exec']
    return []


class Ins:
    __slots__ = ('mn', 'cls', 'w', 'r', 'dpp_r', 'text', 'is_trans', 'is_dl', 'store_data', 'srcC')


def split_ops(s):
    out = []
    depth = 0
    cur = ''
    for ch in s:
        if ch in '[(':
            depth += 1
        if ch in '])':
            depth -= 1
        if ch == ',' and depth == 0:
            out.append(cur.strip())
            cur = ''
        else:
            cur += ch
    if cur.strip():
        out.append(cur.strip())
    return out


def parse(text):
    t = text.strip()
    t = t.split(';')[0].strip()
    m = re.match(r'^(\S+)\s*(.*)$', t)
    mn, rest = m.group(1), m.group(2)
    i = Ins()
    i.text = text
    i.mn = mn
    i.w = set()
    i.r = set()
    i.dpp_r = set()
    i.is_trans = False
    i.is_dl = False
    i.store_data = set()
    i.srcC = set()
    ops = split_ops(rest)
    mods = ''
    if ops:
        parts = ops[-1].split(None, 1)
        if len(parts) == 2 and not parts[0].startswith('quad_perm'):
            ops[-1] = parts[0]
            mods = parts[1]
    base = re.sub(r'_(e32|e64|dpp|sdwa)$', '', mn)
    if mn.startswith('v_'):
        i.cls = 'valu'
        is_dpp = mn.endswith('_dpp') or 'row_' in mods or 'quad_perm' in mods
        if base.startswith('v_mfma'):
            i.cls = 'mfma'
            i.w |= set(expand(ops[0]))
            i.r |= set(expand(ops[1])) | set(expand(ops[2])) | set(expand(ops[3]))
            i.srcC |= set(expand(ops[3]))
        elif base.startswith('v_cmp'):
            i.w |= set(expand(ops[0]))
            for o in ops[1:]:
                i.r |= set(expand(o))
        elif base in ('v_permlane32_swap_b32', 'v_permlane16_swap_b32', 'v_swap_b32'):
            for o in ops[:2]:
                i.w |= set(expand(o))
                i.r |= set(expand(o))
        elif base in ('v_add_co_u32', 'v_sub_co_u32', 'v_addc_co_u32', 'v_subb_co_u32', 'v_div_scale_f32'):
            i.w |= set(expand(ops[0])) | set(expand(ops[1]))
            for o in ops[2:]:
                i.r |= set(expand(o))
        else:
            i.w |= set(expand(ops[0]))
            for o in ops[1:]:
                i.r |= set(expand(o))
            if base in ('v_fmac_f32', 'v_dot2c_f32_bf16', 'v_pk_fmac_f16', 'v_dot2c_f32_f16'):
                i.r |= set(expand(ops[0]))
                i.srcC |= set(expand(ops[0]))
            if base == 'v_dot2_f32_bf16':
                i.srcC |= set(expand(ops[3]))
            if base == 'v_cndmask_b32' and len(ops) == 3:
                i.r.add('vcc')
            if is_dpp:
                i.dpp_r |= set(expand(ops[1]))
        if base in TRANS:
            i.is_trans = True
        if base.startswith('v_dot'):
            i.is_dl = True
    elif mn.startswith('s_'):
        i.cls = 'salu'
        if mn.startswith(('s_cmp', 's_cbranch', 's_branch', 's_waitcnt', 's_nop', 's_barrier', 's_endpgm', 's_sleep',
                          's_setprio', 's_bitcmp')):
            for o in ops:
                i.r |= set(expand(o))
        else:
            if ops:
                i.w |= set(expand(ops[0]))
            for o in ops[1:]:
                i.r |= set(expand(o))
            if 'saveexec' in mn:
                i.w.add('exec')
                i.r.add('exec')
        if mn.startswith(('s_load', 's_buffer_load', 's_memtime', 's_memrealtime')):
            i.cls = 'smem'
    elif mn.startswith(('buffer_', 'global_', 'flat_')):
        i.cls = 'vmem'
        lds = ' lds' in (' ' + mods) or 'load_lds' in mn
        if 'store' in mn:
            for o in ops:
                i.r |= set(expand(o))
            if mn.endswith(('x3', 'x4')):
                d = ops[0] if mn.startswith('buffer_') else ops[1]
                i.store_data = set(expand(d))
        elif 'atomic' in mn:
            for o in ops:
                i.r |= set(expand(o))
            if 'sc0' in mods:
                i.w |= set(expand(ops[0]))
        elif 'load' in mn:
            if lds:
                for o in ops:
                    i.r |= set(expand(o))
                i.r.add('m0')
            else:
                i.w |= set(expand(ops[0]))
                for o in ops[1:]:
                    i.r |= set(expand(o))
    elif mn.startswith('ds_'):
        i.cls = 'ds'
        if 'write' in mn or mn.startswith('ds_add') and 'rtn' not in mn:
            for o in ops:
                i.r |= set(expand(o))
        else:
            i.w |= set(expand(ops[0]))
            for o in ops[1:]:
                i.r |= set(expand(o))
    else:
        i.cls = 'other'
    return i


def base_mn(mn):
    return re.sub(r'_(e32|e64|dpp|sdwa)$', '', mn)


def required(p, c):
    need = 0
    pb, cb = base_mn(p.mn), base_mn(c.mn)
    if p.cls == 'valu':
        wv = {x for x in p.w if x[0] in 'va' and x not in ('vcc',)}
        ws = {x for x in p.w if x[0] == 's' or x == 'vcc'}
        if c.cls == 'valu':
            if wv & c.dpp_r:
                need = max(need, 2)
            if cb in ('v_readfirstlane_b32', 'v_readlane_b32') and wv & c.r:
                need = max(need, 1)
            if cb.startswith('v_permlane') and wv & c.r:
                need = max(need, 2)
            if p.is_trans and not c.is_trans and wv & (c.r | c.w):
                need = max(need, 1)
            if p.is_dl and wv & (c.r | c.w):
                if pb == cb and not (wv & (c.r - c.srcC)):
                    pass
                else:
                    need = max(need, 3)
            if ws & c.r:
                need = max(need, 4 if cb in ('v_readlane_b32', 'v_writelane_b32') else 2)
            if 'exec' in p.w:
                need = max(need, 5)
        elif c.cls in ('vmem', 'ds'):
            if ws & c.r:
                need = max(need, 5)
            if p.is_dl and wv & c.r:
                need = max(need, 3)
            if p.is_trans and wv & c.r:
                need = max(need, 1)
        elif c.cls == 'mfma':
            if wv & c.r:
                need = max(need, 3 if p.is_dl else 2)
    if p.cls == 'mfma':
        if c.cls == 'mfma':
            ab = c.r - c.srcC
            if p.w & ab:
                need = max(need, 8)
            if p.w & c.srcC and p.w != c.srcC:
                need = max(need, 6)
            if p.w & c.w and p.w != c.srcC:
                need = max(need, 8)
        else:
            if p.w & (c.r | c.w):
                need = max(need, 8)
            if c.cls == 'valu' and p.srcC & c.w:
                need = max(need, 3)
    if p.cls == 'vmem' and p.store_data and (p.store_data & c.w):
        need = max(need, 2)
    if p.cls == 'salu' and 'm0' in p.w and 'm0' in c.r and c.cls in ('vmem', 'ds'):
        need = max(need, 1)
    return need


class Asm:
    def __init__(self):
        self.lines = []
        self.hist = []
        self.vm = []
        self.nlabel = 0

    def raw(self, s):
        self.lines.append(s)

    def comment(self, s):
        self.lines.append('  ; ' + s)

    def label(self, name, pad=True):
        self.lines.append(f'{name}:')
        self.hist = []
        if pad:
            self.lines.append('  s_nop 4')

    def newlabel(self, p='L'):
        self.nlabel += 1
        return f'{p}_{self.nlabel}'

    def __call__(self, text, tag=None):
        i = parse(text)
        if i.mn == 's_nop':
            n = int(text.split()[1]) + 1
            self.lines.append('  ' + text)
            self.hist.append((i, n))
            self.hist = self.hist[-14:]
            return
        dist = 0
        need_extra = 0
        for p, slots in reversed(self.hist):
            r = required(p, i)
            if r > dist:
                need_extra = max(need_extra, r - dist)
            dist += slots
            if dist >= 10:
                break
        if need_extra:
            self.lines.append(f'  s_nop {need_extra - 1}')
            self.hist.append((parse('s_nop 0'), need_extra))
        self.lines.append('  ' + text)
        self.hist.append((i, 1))
        self.hist = self.hist[-14:]
        if i.cls == 'vmem' and not i.mn.startswith(('buffer_wbl2', 'buffer_inv')):
            assert len(self.vm) < 63, 'too many outstanding vmem'
            self.vm.append(tag)

    def vm_wait(self, tag):
        if tag not in self.vm:
            return
        idx = len(self.vm) - 1 - self.vm[::-1].index(tag)
        n_after = len(self.vm) - 1 - idx
        self(f's_waitcnt vmcnt({n_after})')
        self.vm = self.vm[idx + 1:]

    def vm_wait_all(self):
        self('s_waitcnt vmcnt(0)')
        self.vm = []

    def vm_room(self, limit=62):
        if len(self.vm) > limit:
            n_after = limit
            self(f's_waitcnt vmcnt({n_after})')
            self.vm = self.vm[len(self.vm) - n_after:]

    def text(self):
        return '\n'.join(self.lines) + '\n'
```

```python
import sys, os
sys.path.insert(0, os.path.dirname(__file__))
from asmgen import Asm

NAME = 'interleave_layers__gqa_block_cached__glu_gated_glu__decode_kernel'

LDSK = 36
NA = 64
VDATA0 = 56
NVQ = (256 - VDATA0) // 4
NKV = 128 - LDSK - NA
NVR = NVQ - NKV
LDSV = 2
LDS_TOTAL = 163840
LDS_DATA = 8192
WAREA = (LDSK + LDSV) * 1024
XN = 0
OWOFF = 0
MLOFF = 512
RP = 2048 + 1024
GP = 4096 + 1024
QP = 6144 + 1024
QL = 4096

ARENA_T = 0x180000
A_X1 = 0x000000
A_RS1 = 0x040000
A_RS2 = 0x0C0000
A_AG1 = 0x140000
A_AG2 = 0x142000
A_X4 = 0x144000
DBG_OFF = 0x4000000

WIN = int(os.environ.get('WIN', '20'))
KRATIO = int(os.environ.get('KRATIO', '2'))
KPAT = os.environ.get('KPAT', 'mfma')
POL_KV = 'nt'
POL_W = ''
XLD = 'sc1'
XST = 'sc1'

vLANE, vOFFV, vOFFK, vOFF = 0, 1, 2, 3
vT, vU, vW_, vX = 4, 5, 6, 7
QB = [8, 12, 16, 20]
SETA = [8, 12, 16, 20]
DS = [24, 28]
PB = [32, 36]
SETB = [24, 28, 32, 36]
vO = list(range(40, 48))
vMW, vLW, vPL0, vPL1 = 48, 49, 50, 51
vM = [52, 53, 54, 55]


def quad(b):
    return [b, b + 1, b + 2, b + 3]


def rq(kind, b):
    return f'{kind}[{b}:{b + 3}]'


def gen(debug=False, prof=False):
    a = Asm()
    R = a.raw
    R(f'; @launch grid=(256,1,1) block=(256,1,1) lds={LDS_TOTAL}')
    R('.amdgcn_target "amdgcn-amd-amdhsa--gfx950"')
    R('.text')
    R(f'.globl {NAME}')
    R('.p2align 8')
    R(f'.type {NAME},@function')
    R(f'{NAME}:')

    dbg_slot = [0]

    def dump(regs, name):
        if not debug:
            return
        slot = dbg_slot[0]
        dbg_slot[0] += 1
        a.vm_wait_all()
        a('s_lshl_b32 s12, s2, 2')
        a('s_add_u32 s12, s12, s3')
        a('s_lshl_b32 s12, s12, 13')
        a('s_lshl_b32 s13, s10, 23')
        a('s_add_u32 s12, s12, s13')
        a(f's_add_u32 s12, s12, {DBG_OFF + slot * 0x1000000}')
        a('s_add_u32 s12, s38, s12')
        a('s_addc_u32 s13, s39, 0')
        a(f'v_lshlrev_b32 v{vX}, 2, v{vLANE}')
        for k, r in enumerate(regs):
            if k and k % 8 == 0:
                a(f'v_add_u32 v{vX}, 2048, v{vX}')
            a(f'global_store_dword v{vX}, {r}, s[12:13] offset:{(k % 8) * 256}')
        a.vm_wait_all()
        print(f'dump slot {slot}: {name} ({len(regs)} regs)', file=sys.stderr)

    stamps = []

    def stamp(name, chain=False):
        if not prof:
            return
        k = len(stamps)
        stamps.append(name)
        a('s_memrealtime s[54:55]')
        a('s_waitcnt lgkmcnt(0)')
        if chain:
            a('s_cmp_eq_u32 s10, 0')
            a(f's_cselect_b32 s{56 + k}, s54, s{56 + k}')
            a(f's_cselect_b32 s{78 + k}, s{78 + k}, s54')
        else:
            a(f's_mov_b32 s{56 + k}, s54')

    def allreduce_row(v, op='add'):
        o = f'v_{op}_f32_dpp'
        a(f'{o} v{v}, v{v}, v{v} quad_perm:[1,0,3,2] row_mask:0xf bank_mask:0xf')
        a(f'{o} v{v}, v{v}, v{v} quad_perm:[2,3,0,1] row_mask:0xf bank_mask:0xf')
        a(f'{o} v{v}, v{v}, v{v} row_half_mirror row_mask:0xf bank_mask:0xf')
        a(f'{o} v{v}, v{v}, v{v} row_mirror row_mask:0xf bank_mask:0xf')

    def allreduce_x16(v, tmp, op='add'):
        a(f'v_mov_b32 v{tmp}, v{v}')
        a(f'v_permlane16_swap_b32 v{tmp}, v{v}')
        a(f'v_{op}_f32 v{v}, v{v}, v{tmp}')

    def allreduce_x32(v, tmp, op='add'):
        a(f'v_mov_b32 v{tmp}, v{v}')
        a(f'v_permlane32_swap_b32 v{tmp}, v{v}')
        a(f'v_{op}_f32 v{v}, v{v}, v{tmp}')

    def allreduce64(v, tmp, op='add'):
        allreduce_row(v, op)
        allreduce_x16(v, tmp, op)
        allreduce_x32(v, tmp, op)

    def bf16r(dst, src):
        a(f'v_cvt_pk_bf16_f32 v{dst}, v{src}, v{src}')
        a(f'v_and_b32 v{dst}, 0xffff0000, v{dst}')

    def round_pairs(r8, tmp4):
        for k in range(4):
            a(f'v_cvt_pk_bf16_f32 v{tmp4[k]}, v{r8[2 * k]}, v{r8[2 * k + 1]}')
        for k in range(4):
            a(f'v_lshlrev_b32 v{r8[2 * k]}, 16, v{tmp4[k]}')
            a(f'v_and_b32 v{r8[2 * k + 1]}, 0xffff0000, v{tmp4[k]}')

    def layernorm(xq, f, d, t0, t1, t2):
        for k in range(4):
            a(f'v_lshlrev_b32 v{f[2 * k]}, 16, v{xq[k]}')
            a(f'v_and_b32 v{f[2 * k + 1]}, 0xffff0000, v{xq[k]}')
        a(f'v_add_f32 v{t0}, v{f[0]}, v{f[1]}')
        for k in range(2, 8):
            a(f'v_add_f32 v{t0}, v{t0}, v{f[k]}')
        allreduce64(t0, t1)
        a(f'v_mul_f32 v{t0}, 0x3b000000, v{t0}')
        for k in range(8):
            a(f'v_sub_f32 v{d[k]}, v{f[k]}, v{t0}')
        a(f'v_mul_f32 v{t2}, v{d[0]}, v{d[0]}')
        for k in range(1, 8):
            a(f'v_fmac_f32 v{t2}, v{d[k]}, v{d[k]}')
        allreduce64(t2, t1)
        a(f'v_mul_f32 v{t2}, 0x3b000000, v{t2}')
        bf16r(t0, t0)
        bf16r(t2, t2)
        a(f'v_add_f32 v{t2}, 0x3727c5ac, v{t2}')
        bf16r(t2, t2)
        a(f'v_sqrt_f32 v{t2}, v{t2}')
        bf16r(t2, t2)
        a(f'v_rcp_f32 v{t1}, v{t2}')
        for k in range(8):
            a(f'v_sub_f32 v{d[k]}, v{f[k]}, v{t0}')
        for k in range(0, 8, 2):
            a(f'v_cvt_pk_bf16_f32 v{f[k]}, v{d[k]}, v{d[k + 1]}')
        for k in range(0, 8, 2):
            a(f'v_and_b32 v{f[k + 1]}, 0xffff0000, v{f[k]}')
            a(f'v_lshlrev_b32 v{f[k]}, 16, v{f[k]}')
        for k in range(8):
            a(f'v_mul_f32 v{d[k]}, v{f[k]}, v{t1}')
        for k in range(8):
            a(f'v_fma_f32 v{f[k]}, -v{d[k]}, v{t2}, v{f[k]}')
        for k in range(8):
            a(f'v_fmac_f32 v{d[k]}, v{f[k]}, v{t1}')
        for k in range(0, 8, 2):
            a(f'v_cvt_pk_bf16_f32 v{f[k]}, v{d[k]}, v{d[k + 1]}')
        for k in range(0, 8, 2):
            a(f'v_lshlrev_b32 v{d[k]}, 16, v{f[k]}')
            a(f'v_and_b32 v{d[k + 1]}, 0xffff0000, v{f[k]}')

    def poll(regs_list, addr_v, base_s, offs):
        lbl = a.newlabel('L_poll')
        a.label(lbl)
        for b, o in zip(regs_list, offs):
            a(f'global_load_dwordx4 v[{b}:{b + 3}], v{addr_v}, {base_s} offset:{o} {XLD}')
        a.vm_wait_all()
        b = regs_list[0]
        a(f'v_max_u32 v{vX}, v{b}, v{b + 1}')
        a(f'v_max3_u32 v{vX}, v{vX}, v{b + 2}, v{b + 3}')
        for b in regs_list[1:]:
            a(f'v_max3_u32 v{vX}, v{vX}, v{b}, v{b + 1}')
            a(f'v_max3_u32 v{vX}, v{vX}, v{b + 2}, v{b + 3}')
        a(f'v_cmp_eq_u32 vcc, -1, v{vX}')
        a('s_sub_u32 s11, s11, 1')
        a('s_cbranch_scc1 L_end')
        a(f's_cbranch_vccnz {lbl}')

    def nosent(v):
        a(f'v_min_u32 v{v}, -2, v{v}')

    def row_reduce8(o):
        for k in range(4):
            a(f'v_permlane32_swap_b32 v{o[k]}, v{o[k + 4]}')
        for k in range(4):
            a(f'v_add_f32 v{o[k]}, v{o[k]}, v{o[k + 4]}')
        for k in range(2):
            a(f'v_permlane16_swap_b32 v{o[k]}, v{o[k + 2]}')
        for k in range(2):
            a(f'v_add_f32 v{o[k]}, v{o[k]}, v{o[k + 2]}')

    a('s_cmp_ge_u32 s2, 256')
    a('s_cbranch_scc1 L_end')
    a('s_load_dwordx16 s[16:31], s[0:1], 0')
    a('s_load_dwordx8 s[32:39], s[0:1], 64')
    a(f'v_lshrrev_b32 v{vT}, 6, v0')
    a(f'v_and_b32 v{vLANE}, 63, v0')
    a(f'v_readfirstlane_b32 s3, v{vT}')
    a(f'v_lshlrev_b32 v{vOFF}, 4, v{vLANE}')
    a(f'v_and_b32 v{vT}, 15, v{vLANE}')
    a(f'v_lshrrev_b32 v{vU}, 4, v{vLANE}')
    a(f'v_lshlrev_b32 v{vOFFV}, 10, v{vU}')
    a(f'v_lshl_add_u32 v{vOFFV}, v{vT}, 4, v{vOFFV}')
    a(f'v_lshlrev_b32 v{vOFFK}, 8, v{vT}')
    a(f'v_lshl_add_u32 v{vOFFK}, v{vU}, 4, v{vOFFK}')
    if KPAT == 'coal':
        a(f'v_mov_b32 v{vOFFK}, v{vOFFV}')
    a('s_and_b32 s4, s2, 31')
    a('s_lshr_b32 s5, s2, 5')
    a('s_mov_b32 s8, 0x3fb8aa3b')
    a('s_mov_b32 s9, 0x3db504f3')
    a('s_mov_b32 s10, 0')
    a('s_mov_b32 s11, 400000')
    a('s_lshl_b32 s6, s4, 22')
    a('s_lshl_b32 s7, s5, 19')
    a('s_add_u32 s6, s6, s7')
    a('s_lshl_b32 s7, s3, 17')
    a('s_add_u32 s6, s6, s7')
    a('s_and_b32 s12, s2, 7')
    a('s_lshr_b32 s13, s2, 3')
    a('s_lshr_b32 s14, s13, 3')
    a('s_lshl_b32 s14, s14, 3')
    a('s_add_u32 s14, s14, s12')
    a('s_lshl_b32 s14, s14, 3')
    a('s_and_b32 s13, s13, 7')
    a('s_add_u32 s48, s14, s13')
    a('s_mov_b32 s52, 0x00010001')
    a('s_mov_b32 s53, 0x00010001')
    a(f's_mul_i32 s49, s3, {WAREA}')
    a(f's_add_u32 s49, s49, {LDS_DATA}')
    a('s_waitcnt lgkmcnt(0)')
    a('s_mov_b32 s40, s18')
    a('s_and_b32 s41, s19, 0xffff')
    a('s_mov_b32 s42, 0x8000000')
    a('s_mov_b32 s43, 0x20000')
    a('s_mov_b32 s44, s20')
    a('s_and_b32 s45, s21, 0xffff')
    a('s_mov_b32 s46, 0x8000000')
    a('s_mov_b32 s47, 0x20000')
    if prof:
        for k in range(56, 100):
            a(f's_mov_b32 s{k}, 0')
    stamp('start')

    a(f'global_load_dwordx4 v[{vM[0]}:{vM[3]}], v{vOFF}, s[16:17]', tag='x')
    a(f'v_lshlrev_b32 v{vU}, 13, v{vU}')
    a(f'v_lshl_add_u32 v{vT}, v{vT}, 4, v{vU}')
    a('s_lshl_b32 s12, s4, 8')
    a('s_lshl_b32 s13, s3, 20')
    a('s_add_u32 s12, s12, s13')
    a(f'v_add_u32 v{vT}, s12, v{vT}')
    kv_arch = [VDATA0 + 4 * i for i in range(NKV)]
    v_ring = [VDATA0 + 4 * (NKV + i) for i in range(NVR)]
    wq_dst = v_ring + kv_arch[-(32 - NVR):]
    a(f'v_mov_b32 v{vMW}, v{vT}')
    a('s_mul_i32 s12, s2, 12288')
    a('s_mul_i32 s13, s3, 3072')
    a('s_add_u32 s12, s12, s13')
    a('s_add_u32 s12, s38, s12')
    a('s_addc_u32 s13, s39, 0')
    for k in range(4):
        a(f'v_mov_b32 v{vO[k]}, -1')
    for k in range(3):
        a(f'global_store_dwordx4 v{vOFF}, v[{vO[0]}:{vO[3]}], s[12:13] offset:{k * 1024} {XST}', tag=f'clr{k}')

    kloc = [('a', 4 * i) for i in range(NA)] + [('l', i) for i in range(LDSK)] + [('v', b) for b in kv_arch]
    assert len(kloc) == 128
    state = {'ks': None, 'm0': None}

    def set_soff(hi):
        if state['ks'] != hi:
            a(f's_add_u32 s7, s6, {hi}')
            state['ks'] = hi

    def set_m0(v):
        if state['m0'] != v:
            a(f's_add_u32 m0, s49, {v}')
            state['m0'] = v

    def issue_k(i):
        a.vm_room()
        kind, b = kloc[i]
        set_soff((i // 4) * 4096)
        lo = (i % 4) * 64
        if KPAT == 'coal':
            lo = (i % 4) * 256
        if kind == 'l':
            set_m0(b * 1024 - lo + 1024)
            a(f'buffer_load_dwordx4 v{vOFFK}, s[40:43], s7 offen offset:{lo} {POL_KV} lds', tag=f'k{i}')
        else:
            a(f'buffer_load_dwordx4 {rq(kind, b)}, v{vOFFK}, s[40:43], s7 offen offset:{lo} {POL_KV}', tag=f'k{i}')

    def issue_v(i, kind, b, tag):
        a.vm_room()
        set_soff((i // 4) * 4096)
        lo = (i % 4) * 256
        POL_KV = 'nt'
        if i < 128 - NVR - LDSV and os.environ.get('POLNR') is not None:
            POL_KV = os.environ['POLNR']
        if kind == 'l':
            set_m0(b * 1024 - lo + 1024)
            a(f'buffer_load_dwordx4 v{vOFFV}, s[44:47], s7 offen offset:{lo} {POL_KV} lds', tag=tag)
        else:
            a(f'buffer_load_dwordx4 {rq(kind, b)}, v{vOFFV}, s[44:47], s7 offen offset:{lo} {POL_KV}', tag=tag)

    a('s_sub_u32 s49, s49, 1024')

    kn = [0]

    wqn = [0]

    def issue_wq():
        n = wqn[0]
        if os.environ.get('NOWQ'):
            wqn[0] += 1
            return
        a(f'global_load_dwordx4 {rq("v", wq_dst[n])}, v{vMW}, s[22:23] {os.environ.get("POLWQ", POL_W)}', tag=f'wq{n}')
        if n < 31:
            a(f'v_add_u32 v{vMW}, 0x8000, v{vMW}')
        wqn[0] += 1

    def issue_more_k(limit=None, upto=128):
        limit = limit or WIN
        while (kn[0] < upto or wqn[0] < 32) and len(a.vm) < limit:
            if wqn[0] < 32:
                issue_wq()
            for _ in range(KRATIO):
                if kn[0] < upto:
                    issue_k(kn[0])
                    kn[0] += 1

    KFREE = 128 - (32 - NVR)
    if os.environ.get('WQFIRST'):
        for _ in range(32):
            issue_wq()
        if os.environ['WQFIRST'] == '2':
            a.vm_wait_all()
    issue_more_k(upto=KFREE)

    stamp('issued')
    a.vm_wait('x')
    stamp('x')
    f8 = list(range(24, 32))
    d8 = list(range(32, 40))
    layernorm(vM, f8, d8, vT, vU, vW_)
    a(f'v_lshrrev_b32 v{vT}, 4, v{vLANE}')
    a(f'v_lshlrev_b32 v{vT}, 9, v{vT}')
    a(f'v_and_b32 v{vU}, 15, v{vLANE}')
    a(f'v_lshl_add_u32 v{vT}, v{vU}, 3, v{vT}')
    for g in range(4):
        a(f'ds_write2_b32 v{vT}, v{d8[g]}, v{d8[4 + g]} offset0:{(XN + g * 128) // 4} offset1:{(XN + g * 128) // 4 + 1}')
    a(f'v_lshrrev_b32 v{vU}, 4, v{vLANE}')
    a(f'v_lshlrev_b32 v{vU}, 7, v{vU}')
    a('s_lshl_b32 s12, s3, 9')
    a(f'v_add_u32 v{vU}, s12, v{vU}')
    a('s_waitcnt lgkmcnt(0)')
    for n4 in range(8):
        a(f'ds_read_b128 {rq("v", 8 + 4 * n4)}, v{vU} offset:{XN + 16 * n4}')
    for k in range(8):
        a(f'v_mov_b32 v{vO[k]}, 0')
    a('s_waitcnt lgkmcnt(0)')
    for n in range(32):
        a.vm_wait(f'wq{n}')
        if n in (0, 31):
            stamp(f'wq{n}')
        issue_more_k(upto=KFREE)
        x = 8 + n
        pl = vPL0 + (n & 1)
        a(f'v_lshrrev_b32 v{pl}, 16, v{x}')
        w = wq_dst[n]
        for d in range(4):
            a(f'v_dot2c_f32_bf16 v{vO[2 * d]}, v{w + d}, v{pl}')
            a(f'v_dot2c_f32_bf16 v{vO[2 * d + 1]}, v{w + d}, v{x}')
    row_reduce8(vO)
    a(f'v_and_b32 v{vT}, 15, v{vLANE}')
    a(f'v_lshlrev_b32 v{vT}, 5, v{vT}')
    a(f'v_lshrrev_b32 v{vU}, 4, v{vLANE}')
    a(f'v_lshl_add_u32 v{vT}, v{vU}, 3, v{vT}')
    a('s_lshl_b32 s12, s3, 9')
    a(f'v_add_u32 v{vT}, s12, v{vT}')
    a(f'ds_write_b64 v{vT}, v[{vO[0]}:{vO[1]}] offset:{QL}')
    a.vm_wait('clr2')
    a('s_waitcnt lgkmcnt(0)')
    a('s_barrier')
    lbl = a.newlabel('L_noatom')
    lbl2 = a.newlabel('L_noatom2')
    a('s_and_b32 s12, s2, 7')
    a('s_lshl_b32 s12, s12, 5')
    a(f'v_mov_b32 v{vT}, s12')
    a(f'v_mov_b32 v{vU}, 1')
    a.vm_room()
    a('s_mov_b64 exec, 1')
    a('s_cmp_lg_u32 s3, 0')
    a(f's_cbranch_scc1 {lbl}')
    a.raw(f'  global_atomic_add v{vT}, v{vU}, s[36:37]')
    a(f's_branch {lbl2}')
    a.label(lbl, pad=False)
    a(f'global_load_dword v55, v{vT}, s[36:37]', tag='atom')
    a.label(lbl2, pad=False)
    a('s_mov_b64 exec, -1')
    issue_more_k()
    a(f'v_lshrrev_b32 v{vT}, 4, v{vLANE}')
    a(f'v_lshlrev_b32 v{vT}, 5, v{vT}')
    for t in range(4):
        for w in range(4):
            a(f'ds_read_b128 {rq("v", 24 + 8 * (w & 1))}, v{vT} offset:{QL + 512 * w + 128 * t}')
            a(f'ds_read_b128 {rq("v", 28 + 8 * (w & 1))}, v{vT} offset:{QL + 512 * w + 128 * t + 16}')
            a('s_waitcnt lgkmcnt(0)')
            for k in range(8):
                if w == 0:
                    a(f'v_mov_b32 v{vO[k]}, v{24 + k}')
                else:
                    a(f'v_add_f32 v{vO[k]}, v{vO[k]}, v{24 + 8 * (w & 1) + k}')
        for k in range(4):
            a(f'v_cvt_pk_bf16_f32 v{QB[t] + k}, v{vO[2 * k]}, v{vO[2 * k + 1]}')
    a('s_barrier')
    dump([f'v{r}' for r in range(8, 24)], 'q1')
    stamp('q1')

    KT = [32, 36, 40, 44]

    def k_phase(first_pass, after_quad=None):
        a(f'v_add_u32 v{vX}, s49, v{vOFF}')
        a(f'v_lshrrev_b32 v{vW_}, 4, v{vLANE}')
        a(f'v_lshlrev_b32 v{vW_}, 4, v{vW_}')
        a('s_lshl_b32 s12, s3, 11')
        a(f'v_add_u32 v{vW_}, s12, v{vW_}')
        for tile in range(33):
            if tile < 32:
                D = DS[tile & 1]
                kind = kloc[4 * tile][0]
                if first_pass:
                    a.vm_wait(f'k{4 * tile + 3}')
                if kind == 'l':
                    for t in range(4):
                        b = kloc[4 * tile + t][1]
                        a(f'ds_read_b128 {rq("v", KT[t])}, v{vX} offset:{b * 1024 + 1024}')
                    a('s_waitcnt lgkmcnt(0)')
                for t in range(4):
                    kind, b = kloc[4 * tile + t]
                    src = rq('v', KT[t]) if kind == 'l' else rq(kind, b)
                    c = '0' if t == 0 else rq('v', D)
                    a(f'v_mfma_f32_16x16x32_bf16 {rq("v", D)}, {src}, {rq("v", QB[t])}, {c}')
                    if after_quad:
                        after_quad(4 * tile + t)
            if tile > 0:
                Dp = DS[(tile - 1) & 1]
                a('s_mov_b64 exec, s[52:53]')
                a(f'ds_write_b128 v{vW_}, {rq("v", Dp)} offset:{(tile - 1) * 64}')
                a('s_mov_b64 exec, -1')
        a(f'v_lshlrev_b32 v{vT}, 5, v{vLANE}')
        a('s_lshl_b32 s12, s3, 11')
        a(f'v_add_u32 v{vT}, s12, v{vT}')
        a('s_waitcnt lgkmcnt(0)')
        a(f'ds_read_b128 v[40:43], v{vT}')
        a(f'ds_read_b128 v[44:47], v{vT} offset:16')
        a('s_waitcnt lgkmcnt(0)')
        round_pairs(vO, [32, 33, 34, 35])
        for k in range(8):
            a(f'v_mul_f32 v{vO[k]}, s9, v{vO[k]}')
        round_pairs(vO, [32, 33, 34, 35])
        if debug:
            dump([f'v{r}' for r in vO], 'scores')
            a(f'v_add_u32 v{vX}, s49, v{vOFF}')
        a(f'v_max3_f32 v{vMW}, v40, v41, v42')
        a(f'v_max3_f32 v{vMW}, v{vMW}, v43, v44')
        a(f'v_max3_f32 v{vMW}, v{vMW}, v45, v46')
        a(f'v_max_f32 v{vMW}, v{vMW}, v47')
        allreduce64(vMW, vU, 'max')
        a(f'v_mul_f32 v{vU}, s8, v{vMW}')
        for k in range(8):
            a(f'v_fma_f32 v{vO[k]}, v{vO[k]}, s8, -v{vU}')
        for k in range(8):
            a(f'v_exp_f32 v{vO[k]}, v{vO[k]}')
        a(f'v_add_f32 v{vLW}, v40, v41')
        for k in range(2, 8):
            a(f'v_add_f32 v{vLW}, v{vLW}, v{vO[k]}')
        round_pairs(vO, [32, 33, 34, 35])
        a(f'ds_write_b128 v{vT}, v[40:43]')
        a(f'ds_write_b128 v{vT}, v[44:47] offset:16')
        allreduce64(vLW, vU)
        for k in range(8):
            a(f'v_mov_b32 v{vO[k]}, 0')
        a('s_waitcnt lgkmcnt(0)')

    def p_read(tile, buf):
        a(f'ds_read_b128 {rq("v", PB[buf])}, v{vW_} offset:{tile * 64}')

    def v_quad(r, buf, src):
        ph = PB[buf] + r
        pl = vPL0 + (r & 1)
        a(f'v_lshrrev_b32 v{pl}, 16, v{ph}')
        for d in range(4):
            a(f'v_dot2c_f32_bf16 v{vO[2 * d]}, v{src[d]}, v{pl}')
            a(f'v_dot2c_f32_bf16 v{vO[2 * d + 1]}, v{src[d]}, v{ph}')

    def load_wo():
        a(f'v_lshrrev_b32 v{vT}, 4, v{vLANE}')
        a(f'v_lshlrev_b32 v{vT}, 10, v{vT}')
        a(f'v_and_b32 v{vU}, 15, v{vLANE}')
        a(f'v_lshl_add_u32 v{vT}, v{vU}, 4, v{vT}')
        a('s_lshl_b32 s12, s4, 17')
        a('s_lshl_b32 s13, s5, 14')
        a('s_add_u32 s12, s12, s13')
        a('s_lshl_b32 s13, s3, 8')
        a('s_add_u32 s12, s12, s13')
        a(f'v_add_u32 v{vT}, s12, v{vT}')
        for j in range(4):
            a.vm_room()
            a(f'global_load_dwordx4 {rq("v", SETA[j])}, v{vT}, s[24:25] {POL_W}', tag=f'wo{j}')
            if j < 3:
                a(f'v_add_u32 v{vT}, 0x1000, v{vT}')

    NRES = NVR + LDSV
    NNR = 128 - NRES

    def v_res_loc(i):
        if i >= 128 - NVR:
            return ('v', v_ring[i % NVR])
        return ('l', LDSK + (i - NNR))

    vn = [0]

    def v1_loc(i):
        if NNR <= i < 128 - NVR:
            return ('l', LDSK + (i - NNR))
        return ('v', v_ring[i % NVR])

    ring_busy = {}

    def try_issue_v1(consumed):
        while vn[0] < 128 and len(a.vm) < WIN:
            i = vn[0]
            loc = v1_loc(i)
            if loc[0] == 'v' and ring_busy.get(loc[1], -1) > consumed:
                break
            issue_v(i, loc[0], loc[1], f'v{i}')
            if loc[0] == 'v':
                ring_busy[loc[1]] = i
            vn[0] += 1

    def p1_after_k(i):
        issue_more_k()
        if kn[0] >= 128:
            try_issue_v1(-1)

    k_phase(True, p1_after_k)
    stamp('K1')
    load_wo()

    def v_src(loc, tmpq):
        kind, b = loc
        if kind == 'v':
            return quad(b)
        if kind == 'a':
            for d in range(4):
                a(f'v_accvgpr_read_b32 v{tmpq + d}, a{b + d}')
            return quad(tmpq)
        a(f'ds_read_b128 {rq("v", tmpq)}, v{vX} offset:{b * 1024 + 1024}')
        a('s_waitcnt lgkmcnt(0)')
        return quad(tmpq)

    p_read(0, 0)
    for tile in range(32):
        a('s_waitcnt lgkmcnt(0)')
        if tile < 31:
            p_read(tile + 1, (tile + 1) & 1)
        for r in range(4):
            i = 4 * tile + r
            a.vm_wait(f'v{i}')
            src = v_src(v1_loc(i), DS[i & 1])
            v_quad(r, tile & 1, src)
            try_issue_v1(i)

    a.label('L_chain')
    a.vm = ['pending']
    a(f's_mul_i32 s12, s10, {ARENA_T}')
    a('s_add_u32 s14, s38, s12')
    a('s_addc_u32 s15, s39, 0')
    stamp('chain_in', True)
    row_reduce8(vO)
    a(f'v_and_b32 v{vT}, 15, v{vLANE}')
    a(f'v_lshlrev_b32 v{vT}, 5, v{vT}')
    a(f'v_lshrrev_b32 v{vU}, 4, v{vLANE}')
    a(f'v_lshl_add_u32 v{vT}, v{vU}, 3, v{vT}')
    a('s_lshl_b32 s12, s3, 11')
    a(f'v_add_u32 v{vT}, s12, v{vT}')
    a(f'ds_write_b64 v{vT}, v[{vO[0]}:{vO[1]}] offset:{OWOFF}')
    a(f'v_mov_b32 v{vT}, s12')
    a(f'ds_write_b64 v{vT}, v[{vMW}:{vLW}] offset:{MLOFF}')
    a('s_waitcnt lgkmcnt(0)')
    a('s_barrier')
    lbl_nw0 = a.newlabel('L_nw0')
    a('s_cmp_lg_u32 s3, 0')
    a(f's_cbranch_scc1 {lbl_nw0}')
    lbl_chk = a.newlabel('L_chk')
    lbl_chkd = a.newlabel('L_chkd')
    a('s_cmp_lg_u32 s10, 0')
    a(f's_cbranch_scc1 {lbl_chkd}')
    a(f'v_and_b32 v{vT}, 7, v{vLANE}')
    a(f'v_lshlrev_b32 v{vT}, 5, v{vT}')
    a.label(lbl_chk)
    a(f'global_load_dword v{vU}, v{vT}, s[36:37] {XLD}')
    a.vm_wait_all()
    a(f'v_cmp_gt_u32 vcc, 32, v{vU}')
    a('s_sub_u32 s11, s11, 1')
    a('s_cbranch_scc1 L_end')
    a(f's_cbranch_vccnz {lbl_chk}')
    a.label(lbl_chkd)
    a(f'v_lshlrev_b32 v{vT}, 3, v{vLANE}')
    a(f'v_mov_b32 v{vU}, 0')
    for w in range(4):
        a(f'ds_read_b64 v[{40 + 2 * w}:{41 + 2 * w}], v{vT} offset:{OWOFF + 2048 * w}')
    for w in range(4):
        a(f'ds_read_b64 v[{48 + 2 * w}:{49 + 2 * w}], v{vU} offset:{MLOFF + 2048 * w}')
    a('s_waitcnt lgkmcnt(0)')
    mregs = [48, 50, 52, 54]
    lregs = [49, 51, 53, 55]
    a(f'v_max_f32 v6, v{mregs[0]}, v{mregs[1]}')
    a(f'v_max3_f32 v6, v6, v{mregs[2]}, v{mregs[3]}')
    for w in range(4):
        a(f'v_sub_f32 v{mregs[w]}, v{mregs[w]}, v6')
        a(f'v_mul_f32 v{mregs[w]}, s8, v{mregs[w]}')
        a(f'v_exp_f32 v{mregs[w]}, v{mregs[w]}')
    a(f'v_mul_f32 v4, v40, v{mregs[0]}')
    a(f'v_mul_f32 v5, v41, v{mregs[0]}')
    a(f'v_mul_f32 v7, v{lregs[0]}, v{mregs[0]}')
    for w in range(1, 4):
        a(f'v_fmac_f32 v4, v{40 + 2 * w}, v{mregs[w]}')
        a(f'v_fmac_f32 v5, v{41 + 2 * w}, v{mregs[w]}')
        a(f'v_fmac_f32 v7, v{lregs[w]}, v{mregs[w]}')
    for r in (4, 5, 6, 7):
        nosent(r)
    a(f'v_lshrrev_b32 v40, 3, v{vLANE}')
    a('v_lshlrev_b32 v40, 15, v40')
    a(f'v_and_b32 v41, 7, v{vLANE}')
    a('v_lshl_add_u32 v40, v41, 4, v40')
    a('s_lshl_b32 s12, s4, 10')
    a('s_lshl_b32 s13, s5, 7')
    a('s_add_u32 s12, s12, s13')
    a(f's_add_u32 s12, s12, {A_X1}')
    a('v_add_u32 v40, s12, v40')
    a(f'global_store_dwordx4 v40, v[4:7], s[14:15] {XST}')
    a.label(lbl_nw0)
    a('s_lshl_b32 s12, s2, 10')
    a(f's_add_u32 s12, s12, {A_X1}')
    a(f'v_add_u32 v{vT}, s12, v{vOFF}')
    poll([40], vT, 's[14:15]', [0])
    stamp('X1', True)
    a('v_mov_b32 v44, v42')
    a('v_max_f32_dpp v44, v44, v44 row_ror:8 row_mask:0xf bank_mask:0xf')
    allreduce_x16(44, 45, 'max')
    allreduce_x32(44, 45, 'max')
    a('v_sub_f32 v42, v42, v44')
    a('v_mul_f32 v42, s8, v42')
    a('v_exp_f32 v42, v42')
    a('v_mul_f32 v40, v40, v42')
    a('v_mul_f32 v41, v41, v42')
    a('v_mul_f32 v43, v43, v42')
    for r in (40, 41, 43):
        a(f'v_add_f32_dpp v{r}, v{r}, v{r} row_ror:8 row_mask:0xf bank_mask:0xf')
    for r in (40, 41, 43):
        allreduce_x16(r, 45)
    for r in (40, 41, 43):
        allreduce_x32(r, 45)
    a('v_rcp_f32 v44, v43')
    a('v_mul_f32 v45, v40, v44')
    a('v_mul_f32 v46, v41, v44')
    a('v_fma_f32 v40, -v45, v43, v40')
    a('v_fma_f32 v41, -v46, v43, v41')
    a('v_fmac_f32 v45, v40, v44')
    a('v_fmac_f32 v46, v41, v44')
    a('v_cvt_pk_bf16_f32 v48, v45, v46')
    dump(['v48'], 'o16')

    def gemv_rows(nq, setq, pairreg, acc):
        a(f'v_lshrrev_b32 v51, 4, v{vLANE}')
        a('v_and_b32 v51, 1, v51')
        a('v_lshlrev_b32 v51, 4, v51')
        for k in range(8):
            a(f'v_mov_b32 v{acc[k]}, 0')
        for j in range(nq):
            a(f'v_mov_b32_dpp v49, v{pairreg} row_newbcast:{2 * j} row_mask:0x3 bank_mask:0xf')
            a(f'v_mov_b32_dpp v49, v{pairreg} row_newbcast:{2 * j + 1} row_mask:0xc bank_mask:0xf')
            a('v_lshrrev_b32 v49, v51, v49')
            a('v_lshlrev_b32 v50, 16, v49')
            a('v_and_b32 v49, 0xffff, v49')
            for d in range(4):
                a(f'v_dot2c_f32_bf16 v{acc[2 * d]}, v{setq[j] + d}, v49')
                a(f'v_dot2c_f32_bf16 v{acc[2 * d + 1]}, v{setq[j] + d}, v50')

    def publish_rs(acc, area, prod_s):
        for k in range(4):
            a(f'v_permlane16_swap_b32 v{acc[k]}, v{acc[k + 4]}')
        for k in range(4):
            a(f'v_add_f32 v{acc[k]}, v{acc[k]}, v{acc[k + 4]}')
        for k in range(4):
            allreduce_x32(acc[k], acc[k + 4])
        for k in range(4):
            nosent(acc[k])
        a(f'v_and_b32 v{vT}, 15, v{vLANE}')
        a(f'v_lshlrev_b32 v{vT}, 13, v{vT}')
        a(f'v_lshrrev_b32 v{vU}, 4, v{vLANE}')
        a(f'v_lshl_add_u32 v{vT}, v{vU}, 4, v{vT}')
        a('s_lshl_b32 s12, s3, 17')
        a(f's_lshl_b32 s13, {prod_s}, 5')
        a('s_add_u32 s12, s12, s13')
        a(f's_add_u32 s12, s12, {area}')
        a(f'v_add_u32 v{vT}, s12, v{vT}')
        a('s_mov_b32 exec_hi, 0')
        a(f'global_store_dwordx4 v{vT}, v[{acc[0]}:{acc[3]}], s[14:15] {XST}')
        a('s_mov_b64 exec, -1')

    gemv_rows(4, SETA, 48, vO)
    publish_rs(vO, A_RS1, 's2')
    stamp('RS1pub', True)
    a('s_min_u32 s12, s48, 171')
    a('s_lshl_b32 s12, s12, 4')
    a(f's_mul_i32 s13, s3, {128 * 2752}')
    a('s_add_u32 s12, s12, s13')
    a(f'v_mul_u32_u24 v{vT}, 2752, v{vLANE}')
    a(f'v_add_u32 v{vT}, s12, v{vT}')
    a(f'v_add_u32 v{vU}, {64 * 2752}, v{vT}')
    a(f'global_load_dwordx4 {rq("v", SETB[0])}, v{vT}, s[28:29] {POL_W}')
    a(f'global_load_dwordx4 {rq("v", SETB[1])}, v{vU}, s[28:29] {POL_W}')
    a(f'global_load_dwordx4 {rq("v", SETB[2])}, v{vT}, s[30:31] {POL_W}')
    a(f'global_load_dwordx4 {rq("v", SETB[3])}, v{vU}, s[30:31] {POL_W}')
    a('s_min_u32 s12, s48, 171')
    a('s_lshl_b32 s12, s12, 13')
    a('s_lshl_b32 s13, s3, 8')
    a('s_add_u32 s12, s12, s13')
    a(f'v_lshrrev_b32 v{vT}, 4, v{vLANE}')
    a(f'v_lshlrev_b32 v{vT}, 10, v{vT}')
    a(f'v_and_b32 v{vU}, 15, v{vLANE}')
    a(f'v_lshl_add_u32 v{vT}, v{vU}, 4, v{vT}')
    a(f'v_add_u32 v{vT}, s12, v{vT}')
    a(f'global_load_dwordx4 {rq("v", SETA[0])}, v{vT}, s[32:33] {POL_W}')
    a(f'v_add_u32 v{vT}, 0x1000, v{vT}')
    a(f'global_load_dwordx4 {rq("v", SETA[1])}, v{vT}, s[32:33] {POL_W}')
    RES = SETA[3]

    def rs_consume(area, nprod, ag_area, final):
        lbl_skip = a.newlabel('L_nocons')
        a('s_cmp_ge_u32 s2, 64')
        a(f's_cbranch_scc1 {lbl_skip}')
        a('s_lshl_b32 s12, s2, 13')
        a('s_lshl_b32 s13, s3, 11')
        a('s_add_u32 s12, s12, s13')
        a(f's_add_u32 s12, s12, {area}')
        a(f'v_add_u32 v{vT}, s12, v{vOFF}')
        if nprod < 256:
            for r in range(40, 48):
                a(f'v_mov_b32 v{r}, 0')
            a(f'v_lshrrev_b32 v{vU}, 1, v{vLANE}')
            a('s_lshl_b32 s13, s3, 6')
            a(f'v_add_u32 v{vU}, s13, v{vU}')
            a(f'v_mov_b32 v{vW_}, {nprod}')
            a(f'v_cmp_lt_u32 s[50:51], v{vU}, v{vW_}')
            a(f'v_add_u32 v{vU}, 32, v{vU}')
            a(f'v_cmp_lt_u32 s[12:13], v{vU}, v{vW_}')
            lbl = a.newlabel('L_poll')
            l0 = a.newlabel('L_s')
            l1 = a.newlabel('L_s')
            a.label(lbl)
            a('s_mov_b64 exec, s[50:51]')
            a(f's_cbranch_execz {l0}')
            a(f'global_load_dwordx4 v[40:43], v{vT}, s[14:15] {XLD}')
            a.label(l0, pad=False)
            a('s_mov_b64 exec, s[12:13]')
            a(f's_cbranch_execz {l1}')
            a(f'global_load_dwordx4 v[44:47], v{vT}, s[14:15] offset:1024 {XLD}')
            a.label(l1, pad=False)
            a('s_mov_b64 exec, -1')
            a.vm_wait_all()
            a(f'v_max_u32 v{vX}, v40, v41')
            a(f'v_max3_u32 v{vX}, v{vX}, v42, v43')
            a(f'v_max3_u32 v{vX}, v{vX}, v44, v45')
            a(f'v_max3_u32 v{vX}, v{vX}, v46, v47')
            a(f'v_cmp_eq_u32 vcc, -1, v{vX}')
            a('s_sub_u32 s11, s11, 1')
            a('s_cbranch_scc1 L_end')
            a(f's_cbranch_vccnz {lbl}')
        else:
            poll([40, 44], vT, 's[14:15]', [0, 1024])
        for k in range(4):
            a(f'v_add_f32 v{40 + k}, v{40 + k}, v{44 + k}')
        for sh in (8, 4, 2):
            for k in range(4):
                r = 40 + k
                a(f'v_add_f32_dpp v{r}, v{r}, v{r} row_ror:{sh} row_mask:0xf bank_mask:0xf')
        for k in range(4):
            allreduce_x16(40 + k, 44 + k)
        for k in range(4):
            allreduce_x32(40 + k, 44 + k)
        a(f'v_and_b32 v{vT}, 1, v{vLANE}')
        a(f'v_lshlrev_b32 v{vT}, 4, v{vT}')
        a('s_lshl_b32 s12, s3, 5')
        a(f'v_add_u32 v{vT}, s12, v{vT}')
        a(f'ds_write_b128 v{vT}, v[40:43] offset:{RP}')
        a('s_waitcnt lgkmcnt(0)')
        a('s_barrier')
        a('s_cmp_lg_u32 s3, 0')
        a(f's_cbranch_scc1 {lbl_skip}')
        a(f'v_mov_b32 v{vT}, 0')
        a(f'ds_read_b128 v[40:43], v{vT} offset:{RP}')
        a(f'ds_read_b128 v[44:47], v{vT} offset:{RP + 16}')
        for w in range(1, 4):
            a(f'ds_read_b128 v[48:51], v{vT} offset:{RP + 32 * w}')
            a(f'ds_read_b128 v[52:55], v{vT} offset:{RP + 32 * w + 16}')
            a('s_waitcnt lgkmcnt(0)')
            for k in range(4):
                a(f'v_add_f32 v{40 + k}, v{40 + k}, v{48 + k}')
                a(f'v_add_f32 v{44 + k}, v{44 + k}, v{52 + k}')
        round_pairs(vO, [48, 49, 50, 51])
        for k in range(4):
            a(f'v_lshlrev_b32 v52, 16, v{RES + k}')
            a(f'v_and_b32 v53, 0xffff0000, v{RES + k}')
            a(f'v_add_f32 v{40 + 2 * k}, v{40 + 2 * k}, v52')
            a(f'v_add_f32 v{41 + 2 * k}, v{41 + 2 * k}, v53')
        for k in range(4):
            a(f'v_cvt_pk_bf16_f32 v{RES + k}, v{40 + 2 * k}, v{41 + 2 * k}')
        if final:
            lbl_nf = a.newlabel('L_notfinal')
            a('s_cmp_eq_u32 s10, 0')
            a(f's_cbranch_scc1 {lbl_nf}')
            a('s_lshl_b32 s12, s2, 4')
            a(f'v_mov_b32 v{vT}, s12')
            a('s_mov_b64 exec, 1')
            a(f'global_store_dwordx4 v{vT}, {rq("v", RES)}, s[34:35]')
            a('s_mov_b64 exec, -1')
            a('s_branch L_end')
            a.label(lbl_nf)
        for k in range(4):
            a(f'v_min_u32 v{40 + k}, -2, v{RES + k}')
        a(f'v_lshlrev_b32 v{vT}, 10, v{vLANE}')
        a('s_lshl_b32 s12, s2, 4')
        a(f's_add_u32 s12, s12, {ag_area}')
        a(f'v_add_u32 v{vT}, s12, v{vT}')
        a('s_mov_b64 exec, 0xff')
        a(f'global_store_dwordx4 v{vT}, v[40:43], s[14:15] {XST}')
        a('s_mov_b64 exec, -1')
        a.label(lbl_skip)

    def ag_ln(ag_area):
        lbl = a.newlabel('L_agskip')
        a('s_cmp_lg_u32 s3, 0')
        a(f's_cbranch_scc1 {lbl}')
        a('s_and_b32 s12, s2, 7')
        a('s_lshl_b32 s12, s12, 10')
        a(f's_add_u32 s12, s12, {ag_area}')
        a(f'v_add_u32 v{vT}, s12, v{vOFF}')
        poll([52], vT, 's[14:15]', [0])
        layernorm(vM, vO, [48, 49, 50, 51, 16, 17, 18, 19], vT, vU, vW_)
        a(f'v_lshlrev_b32 v{vT}, 5, v{vLANE}')
        a(f'ds_write_b128 v{vT}, v[48:51] offset:{XN}')
        a(f'ds_write_b128 v{vT}, v[16:19] offset:{XN + 16}')
        a('s_waitcnt lgkmcnt(0)')
        a.label(lbl)
        a('s_barrier')

    def load_wq_slice():
        a(f'v_and_b32 v{vT}, 31, v{vLANE}')
        a(f'v_lshlrev_b32 v{vT}, 13, v{vT}')
        a(f'v_lshrrev_b32 v{vU}, 5, v{vLANE}')
        a(f'v_lshl_add_u32 v{vT}, v{vU}, 4, v{vT}')
        a('s_lshl_b32 s12, s4, 8')
        a('s_lshl_b32 s13, s5, 5')
        a('s_add_u32 s12, s12, s13')
        a('s_lshl_b32 s13, s3, 20')
        a('s_add_u32 s12, s12, s13')
        a(f'v_add_u32 v{vT}, s12, v{vT}')
        for n in range(4):
            a(f'global_load_dwordx4 {rq("v", SETB[n])}, v{vT}, s[22:23] {POL_W}')
            if n < 3:
                a(f'v_add_u32 v{vT}, 0x40000, v{vT}')

    lbl = a.newlabel('L_res')
    lbl2 = a.newlabel('L_res2')
    a('s_and_b32 s12, s2, 63')
    a('s_lshl_b32 s12, s12, 4')
    a(f'v_mov_b32 v{vT}, s12')
    a('s_cmp_lg_u32 s10, 0')
    a(f's_cbranch_scc1 {lbl}')
    a(f'global_load_dwordx4 {rq("v", RES)}, v{vT}, s[16:17]')
    a(f's_branch {lbl2}')
    a.label(lbl)
    a(f'v_add_u32 v{vT}, {A_AG2}, v{vT}')
    a(f'global_load_dwordx4 {rq("v", RES)}, v{vT}, s[38:39] {XLD}')
    a.label(lbl2)

    rs_consume(A_RS1, 256, A_AG1, False)
    stamp('RS1cons', True)
    ag_ln(A_AG1)
    stamp('AG1', True)

    lbl_noglu = a.newlabel('L_noglu')
    a('s_cmp_ge_u32 s48, 172')
    a(f's_cbranch_scc1 {lbl_noglu}')
    a(f'v_lshlrev_b32 v{vT}, 2, v{vLANE}')
    a('s_lshl_b32 s12, s3, 9')
    a(f'v_add_u32 v{vT}, s12, v{vT}')
    a(f'ds_read_b32 v48, v{vT} offset:{XN}')
    a(f'ds_read_b32 v49, v{vT} offset:{XN + 256}')
    a.vm_wait_all()
    a('s_waitcnt lgkmcnt(0)')
    a('v_lshrrev_b32 v50, 16, v48')
    a('v_lshrrev_b32 v51, 16, v49')
    for which in range(2):
        for k in range(8):
            a(f'v_mov_b32 v{40 + k}, 0')
        for n in range(2):
            w = SETB[2 * which + n]
            for d in range(4):
                a(f'v_dot2c_f32_bf16 v{40 + 2 * d}, v{w + d}, v{50 + n}')
                a(f'v_dot2c_f32_bf16 v{41 + 2 * d}, v{w + d}, v{48 + n}')
        for k in range(4):
            a(f'v_permlane32_swap_b32 v{40 + k}, v{44 + k}')
        for k in range(4):
            a(f'v_add_f32 v{40 + k}, v{40 + k}, v{44 + k}')
        for k in range(2):
            a(f'v_permlane16_swap_b32 v{40 + k}, v{42 + k}')
        for k in range(2):
            a(f'v_add_f32 v{40 + k}, v{40 + k}, v{42 + k}')
        dst = 52 + which
        a(f'v_add_f32_dpp v{dst}, v40, v40 row_ror:8 row_mask:0xf bank_mask:0x3')
        a(f'v_add_f32_dpp v{dst}, v41, v41 row_ror:8 row_mask:0xf bank_mask:0xc')
        a(f'v_add_f32_dpp v{dst}, v{dst}, v{dst} row_half_mirror row_mask:0xf bank_mask:0xf')
        a(f'v_add_f32_dpp v{dst}, v{dst}, v{dst} quad_perm:[1,0,3,2] row_mask:0xf bank_mask:0xf')
        a(f'v_add_f32_dpp v{dst}, v{dst}, v{dst} quad_perm:[2,3,0,1] row_mask:0xf bank_mask:0xf')
    a(f'v_lshrrev_b32 v{vT}, 3, v{vLANE}')
    a(f'v_lshlrev_b32 v{vT}, 4, v{vT}')
    a('s_lshl_b32 s12, s3, 2')
    a(f'v_add_u32 v{vT}, s12, v{vT}')
    a(f'ds_write_b32 v{vT}, v52 offset:{GP}')
    a(f'ds_write_b32 v{vT}, v53 offset:{GP + 128}')
    load_wq_slice()
    a('s_waitcnt lgkmcnt(0)')
    a('s_barrier')
    a(f'v_and_b32 v{vT}, 3, v{vLANE}')
    a(f'v_lshlrev_b32 v{vT}, 5, v{vT}')
    a(f'ds_read_b128 v[40:43], v{vT} offset:{GP}')
    a(f'ds_read_b128 v[44:47], v{vT} offset:{GP + 16}')
    a(f'ds_read_b128 v[48:51], v{vT} offset:{GP + 128}')
    a(f'ds_read_b128 v[52:55], v{vT} offset:{GP + 144}')
    a('s_waitcnt lgkmcnt(0)')
    for b in (40, 44, 48, 52):
        a(f'v_add_f32 v{b}, v{b}, v{b + 1}')
        a(f'v_add_f32 v{b + 2}, v{b + 2}, v{b + 3}')
        a(f'v_add_f32 v{b}, v{b}, v{b + 2}')
    a('v_cvt_pk_bf16_f32 v41, v40, v44')
    a('v_cvt_pk_bf16_f32 v42, v48, v52')
    a('v_lshlrev_b32 v40, 16, v41')
    a('v_and_b32 v44, 0xffff0000, v41')
    a('v_lshlrev_b32 v48, 16, v42')
    a('v_and_b32 v52, 0xffff0000, v42')
    for r in (40, 44):
        a(f'v_mul_f32 v{r}, s8, v{r}')
        a(f'v_exp_f32 v{r}, -v{r}')
        a(f'v_add_f32 v{r}, 1.0, v{r}')
        a(f'v_rcp_f32 v{r}, v{r}')
    a('v_cvt_pk_bf16_f32 v41, v40, v44')
    a('v_lshlrev_b32 v40, 16, v41')
    a('v_and_b32 v44, 0xffff0000, v41')
    a('v_mul_f32 v40, v40, v48')
    a('v_mul_f32 v44, v44, v52')
    a('v_cvt_pk_bf16_f32 v48, v40, v44')
    dump(['v48'], 'h')
    gemv_rows(2, SETA, 48, vO)
    publish_rs(vO, A_RS2, 's48')
    a.label(lbl_noglu)
    stamp('RS2pub', True)
    rs_consume(A_RS2, 172, A_AG2, True)
    stamp('RS2cons', True)
    a('s_cmp_lg_u32 s10, 0')
    a('s_cbranch_scc1 L_end')
    lbl_hasq = a.newlabel('L_hasq')
    a('s_cmp_lt_u32 s48, 172')
    a(f's_cbranch_scc1 {lbl_hasq}')
    load_wq_slice()
    a.label(lbl_hasq)
    ag_ln(A_AG2)
    stamp('AG2')
    a(f'v_and_b32 v{vT}, 31, v{vLANE}')
    a(f'v_lshlrev_b32 v{vT}, 2, v{vT}')
    a('s_lshl_b32 s12, s3, 9')
    a(f'v_add_u32 v{vT}, s12, v{vT}')
    for n in range(4):
        a(f'ds_read_b32 v{48 + n}, v{vT} offset:{XN + 128 * n}')
    for k in range(8):
        a(f'v_mov_b32 v{40 + k}, 0')
    a.vm_wait_all()
    a('s_waitcnt lgkmcnt(0)')
    for n in range(4):
        a(f'v_lshrrev_b32 v{52 + n}, 16, v{48 + n}')
    for n in range(4):
        w = SETB[n]
        for d in range(4):
            a(f'v_dot2c_f32_bf16 v{40 + 2 * d}, v{w + d}, v{52 + n}')
            a(f'v_dot2c_f32_bf16 v{41 + 2 * d}, v{w + d}, v{48 + n}')
    for k in range(4):
        a(f'v_permlane16_swap_b32 v{40 + k}, v{44 + k}')
    for k in range(4):
        a(f'v_add_f32 v{40 + k}, v{40 + k}, v{44 + k}')
    a('v_add_f32_dpp v44, v40, v40 row_ror:8 row_mask:0xf bank_mask:0x3')
    a('v_add_f32_dpp v45, v41, v41 row_ror:8 row_mask:0xf bank_mask:0x3')
    a('v_add_f32_dpp v44, v42, v42 row_ror:8 row_mask:0xf bank_mask:0xc')
    a('v_add_f32_dpp v45, v43, v43 row_ror:8 row_mask:0xf bank_mask:0xc')
    a('v_add_f32_dpp v46, v44, v44 row_half_mirror row_mask:0xf bank_mask:0x5')
    a('v_add_f32_dpp v46, v45, v45 row_half_mirror row_mask:0xf bank_mask:0xa')
    a('v_add_f32_dpp v46, v46, v46 quad_perm:[1,0,3,2] row_mask:0xf bank_mask:0xf')
    a('v_add_f32_dpp v46, v46, v46 quad_perm:[2,3,0,1] row_mask:0xf bank_mask:0xf')
    a(f'v_lshrrev_b32 v{vT}, 2, v{vLANE}')
    a(f'v_lshlrev_b32 v{vT}, 4, v{vT}')
    a('s_lshl_b32 s12, s3, 2')
    a(f'v_add_u32 v{vT}, s12, v{vT}')
    a(f'ds_write_b32 v{vT}, v46 offset:{QP}')
    a('s_waitcnt lgkmcnt(0)')
    a('s_barrier')
    lbl = a.newlabel('L_nq')
    a('s_cmp_lg_u32 s3, 0')
    a(f's_cbranch_scc1 {lbl}')
    a(f'v_and_b32 v{vT}, 7, v{vLANE}')
    a(f'v_lshlrev_b32 v{vT}, 5, v{vT}')
    a(f'ds_read_b128 v[40:43], v{vT} offset:{QP}')
    a(f'ds_read_b128 v[44:47], v{vT} offset:{QP + 16}')
    a('s_waitcnt lgkmcnt(0)')
    for b in (40, 44):
        a(f'v_add_f32 v{b}, v{b}, v{b + 1}')
        a(f'v_add_f32 v{b + 2}, v{b + 2}, v{b + 3}')
        a(f'v_add_f32 v{b}, v{b}, v{b + 2}')
    a('v_cvt_pk_bf16_f32 v40, v40, v44')
    nosent(40)
    a(f'v_lshlrev_b32 v{vT}, 2, v{vLANE}')
    a('s_lshl_b32 s12, s4, 8')
    a('s_lshl_b32 s13, s5, 5')
    a('s_add_u32 s12, s12, s13')
    a(f's_add_u32 s12, s12, {A_X4}')
    a(f'v_add_u32 v{vT}, s12, v{vT}')
    a('s_mov_b64 exec, 0xff')
    a(f'global_store_dword v{vT}, v40, s[14:15] {XST}')
    a('s_mov_b64 exec, -1')
    a.label(lbl)
    a(f'v_lshrrev_b32 v{vT}, 4, v{vLANE}')
    a(f'v_lshlrev_b32 v{vT}, 4, v{vT}')
    a('s_lshl_b32 s12, s4, 8')
    a(f's_add_u32 s12, s12, {A_X4}')
    a(f'v_add_u32 v{vT}, s12, v{vT}')
    poll(QB, vT, 's[14:15]', [0, 64, 128, 192])
    dump([f'v{r}' for r in range(8, 24)], 'q2')
    stamp('X4')

    a.vm = []
    state['ks'] = None
    state['m0'] = None
    free_dst = []
    p2 = {'vn': 0}
    vdst = {}

    def p2_issue(force=False):
        while p2['vn'] < NNR and free_dst and (len(a.vm) < WIN or force):
            d = free_dst.pop(0)
            vdst[p2['vn']] = d
            issue_v(p2['vn'], d[0], d[1], f'w{p2["vn"]}')
            p2['vn'] += 1

    def p2_after_k(i):
        kind, b = kloc[i]
        if kind != 'l':
            free_dst.append((kind, b))
        p2_issue()

    k_phase(False, p2_after_k)
    stamp('K2')
    load_wo()
    first_res_tile = (NNR + 3) // 4
    order = list(range(first_res_tile, 32)) + list(range(0, first_res_tile))
    p_read(order[0], 0)
    for n, tile in enumerate(order):
        a('s_waitcnt lgkmcnt(0)')
        if n < 31:
            p_read(order[n + 1], (n + 1) & 1)
        for r in range(4):
            i = 4 * tile + r
            if i >= NNR:
                loc = v_res_loc(i)
            else:
                a.vm_wait(f'w{i}')
                loc = vdst[i]
            src = v_src(loc, DS[i & 1])
            v_quad(r, n & 1, src)
            if i >= NNR and loc[0] == 'v':
                free_dst.append(loc)
            p2_issue()
    a('s_mov_b32 s10, 1')
    a('s_branch L_chain')

    a.label('L_end', pad=False)
    if prof:
        a('s_cmp_ge_u32 s2, 256')
        a('s_cbranch_scc1 L_end2')
        a('s_memrealtime s[54:55]')
        a('s_waitcnt lgkmcnt(0)')
        a('s_mov_b32 s99, s54')
        a('s_mov_b64 exec, -1')
        a('s_lshl_b32 s12, s2, 2')
        a('s_add_u32 s12, s12, s3')
        a('s_lshl_b32 s12, s12, 8')
        a(f's_add_u32 s12, s12, {DBG_OFF}')
        a('s_add_u32 s12, s38, s12')
        a('s_addc_u32 s13, s39, 0')
        a('v_mov_b32 v1, 0')
        a.vm = []
        for k in range(44):
            a(f'v_mov_b32 v2, s{56 + k}')
            a(f'global_store_dword v1, v2, s[12:13] offset:{4 * k}')
            a.vm = []
        a.label('L_end2', pad=False)
        print('stamps', ','.join(stamps), file=sys.stderr)
    a('s_endpgm')
    R('.section .rodata,"a"')
    R('.p2align 6')
    R(f'.amdhsa_kernel {NAME}')
    R('  .amdhsa_next_free_vgpr 512')
    R('  .amdhsa_next_free_sgpr 102')
    R('  .amdhsa_accum_offset 256')
    R('  .amdhsa_group_segment_fixed_size 0')
    R('  .amdhsa_kernarg_size 96')
    R('  .amdhsa_user_sgpr_count 2')
    R('  .amdhsa_user_sgpr_kernarg_segment_ptr 1')
    R('  .amdhsa_system_sgpr_workgroup_id_x 1')
    R('.end_amdhsa_kernel')
    return a.text()


if __name__ == '__main__':
    debug = '--debug' in sys.argv
    out = [x for x in sys.argv[1:] if not x.startswith('--')]
    path = out[0] if out else 'interleave_layers__gqa_block_cached__glu_gated_glu__decode.s'
    open(path, 'w').write(gen(debug=debug, prof='--prof' in sys.argv))
    print('wrote', path)
```
